```python
import torch

def _softmax(x, axis=-1):
    return torch.softmax(x, dim=axis)
def _gelu(x):
    return torch.nn.functional.gelu(x, approximate="tanh")
def _silu(x):
    return torch.nn.functional.silu(x)
def _sigmoid(x):
    return torch.sigmoid(x)
def _layernorm(x, axis=-1, eps=1e-5):
    m = x.mean(dim=axis, keepdim=True)
    v = x.var(dim=axis, keepdim=True, unbiased=False)
    return (x - m) / torch.sqrt(v + eps)
def _scatter_add(tgt, idx, src, axis=0):
    return tgt.clone().index_add_(axis, idx, src)
def _segment_sum(src, seg, n):
    out = torch.zeros((n,) + src.shape[1:], dtype=src.dtype)
    return out.index_add_(0, seg, src)
def _pad(x, pw):
    flat = tuple(v for pair in reversed(pw) for v in pair)
    return torch.nn.functional.pad(x, flat)

kernel_name = 'parallel_sum__compressed_kv_cla__dense_activation_gelu__prompt'

def setup_inputs():

    _w = (lambda a: (lambda t: t.to(torch.bfloat16) if t.is_floating_point() else t)(torch.as_tensor(a)))
    def _A_setup():
        B, H, Sq, Sk, D, M = 1, 32, 2048, 2048, 128, 1024
        Dc = 4 * D
        return {
            "x": _w((lambda *s: torch.randn(*s, dtype=torch.bfloat16) * 0.05)(B, Sq, M)),
            "c_kv": _w((lambda *s: torch.randn(*s, dtype=torch.bfloat16) * 0.4)(B, Sk, Dc)),
            "w_q": _w((lambda *s: torch.randn(*s, dtype=torch.bfloat16) * 3.2)(M, H, D) * (M ** -0.5)),
            "w_uk": _w((lambda *s: torch.randn(*s, dtype=torch.bfloat16) * 3.2)(Dc, H, D) * (Dc ** -0.5)),
            "w_uv": _w((lambda *s: torch.randn(*s, dtype=torch.bfloat16) * 0.4)(Dc, H, D) * (Dc ** -0.5)),
            "w_o": _w((lambda *s: torch.randn(*s, dtype=torch.bfloat16) * 0.4)(H, D, M) * ((H * D) ** -0.5)),
        }
    _A_in = _A_setup()

    def _B_setup():
        B, S, D, F = 1, 2048, 1024, 3584
        return {
            "x": _w((lambda *s: torch.randn(*s, dtype=torch.bfloat16) * 0.05)(B, S, D)),
            "w1": _w((lambda *s: torch.randn(*s, dtype=torch.bfloat16) * 0.4)(D, F) * (D ** -0.5)),
            "b1": _w((lambda *s: torch.randn(*s, dtype=torch.bfloat16) * 12.8)(F) * 0.01),
            "w2": _w((lambda *s: torch.randn(*s, dtype=torch.bfloat16) * 0.2)(F, D) * (F ** -0.5)),
            "b2": _w((lambda *s: torch.randn(*s, dtype=torch.bfloat16) * 1.6)(D) * 0.01),
        }
    _B_in = _B_setup()

    return {
        "A_x": _A_in["x"],
        "A_c_kv": _A_in["c_kv"],
        "A_w_q": _A_in["w_q"],
        "A_w_uk": _A_in["w_uk"],
        "A_w_uv": _A_in["w_uv"],
        "A_w_o": _A_in["w_o"],
        "B_x": _B_in["x"],
        "B_w1": _B_in["w1"],
        "B_b1": _B_in["b1"],
        "B_w2": _B_in["w2"],
        "B_b2": _B_in["b2"],
    }

def reference(A_x, A_c_kv, A_w_q, A_w_uk, A_w_uv, A_w_o, B_x, B_w1, B_b1, B_w2, B_b2):
    def _A_ref(x, c_kv, w_q, w_uk, w_uv, w_o):
        B, Sq, M = x.shape[0], x.shape[1], x.shape[2]
        Sk = c_kv.shape[1]
        H, D = w_q.shape[1], w_q.shape[2]
        q = torch.einsum("bqm,mhd->bhqd", x, w_q)
        k = torch.einsum("bkc,chd->bhkd", c_kv, w_uk)
        v = torch.einsum("bkc,chd->bhkd", c_kv, w_uv)
        scores = torch.einsum("bhqd,bhkd->bhqk", q, k) * (D ** -0.5)
        off = Sk - Sq
        qi = torch.arange(Sq)[:, None]
        kj = torch.arange(Sk)[None, :]
        cmask = kj <= (qi + off)
        scores = torch.where(cmask[None, None], scores, -1e9)
        p = _softmax(scores, axis=-1)
        ctx = torch.einsum("bhqk,bhkd->bhqd", p, v)
        return torch.einsum("bhqd,hdm->bqm", ctx, w_o)

    def _B_ref(x, w1, b1, w2, b2):
        h = torch.einsum("bsd,df->bsf", x, w1) + b1
        h = _gelu(h)
        return torch.einsum("bsf,fd->bsd", h, w2) + b2

    x = A_x
    xn = _layernorm(x, axis=-1)
    return x + _A_ref(xn, A_c_kv, A_w_q, A_w_uk, A_w_uv, A_w_o) + _B_ref(xn, B_w1, B_b1, B_w2, B_b2)
```

```python
class Asm:
    def __init__(self):
        self.lines = []
        self._uid = 0
    def __call__(self, s, *a):
        for ln in s.strip("\n").split("\n"):
            ln = ln.strip()
            if ln:
                self.lines.append("    " + ln)
    def label(self, l):
        self.lines.append(l + ":")
    def raw(self, s):
        self.lines.append(s)
    def c(self, s):
        self.lines.append("    ; " + s)
    def uid(self, p="L"):
        self._uid += 1
        return "%s_%d" % (p, self._uid)
    def text(self):
        return "\n".join(self.lines) + "\n"

def vr(b, n=1):
    return "v%d" % b if n == 1 else "v[%d:%d]" % (b, b + n - 1)
def sr(b, n=1):
    return "s%d" % b if n == 1 else "s[%d:%d]" % (b, b + n - 1)
def ar(b, n=1):
    return "a%d" % b if n == 1 else "a[%d:%d]" % (b, b + n - 1)

import struct
def f32(x):
    return "0x%08x" % struct.unpack("<I", struct.pack("<f", x))[0]

def kernel_desc(name, vgpr, sgpr, accum=None):
    if accum is None:
        accum = min(256, (vgpr + 3) // 4 * 4)
    return f""".p2align 6
.amdhsa_kernel {name}
  .amdhsa_next_free_vgpr {vgpr}
  .amdhsa_next_free_sgpr {sgpr}
  .amdhsa_accum_offset {accum}
  .amdhsa_group_segment_fixed_size 0
  .amdhsa_kernarg_size 112
  .amdhsa_user_sgpr_count 2
  .amdhsa_user_sgpr_kernarg_segment_ptr 1
  .amdhsa_system_sgpr_workgroup_id_x 1
  .amdhsa_float_denorm_mode_32 3
  .amdhsa_float_denorm_mode_16_64 3
.end_amdhsa_kernel
"""
```

```python
import sys, math
sys.path.insert(0, "dev")
from asmlib import *

NAME = "parallel_sum__compressed_kv_cla__dense_activation_gelu__prompt"
MB = 1 << 20
WS_XN, WS_Q, WS_K, WS_V, WS_ACT2, WS_PART = 0, 4 * MB, 20 * MB, 36 * MB, 52 * MB, 84 * MB
WS_SIZE = 256 * MB
LD_ACT2 = 7680 * 2

S_X, S_CKV, S_WQ, S_WUK, S_WUV, S_WO, S_BX, S_W1 = 16, 18, 20, 22, 24, 26, 28, 30
S_B1, S_W2, S_B2, S_OUT, S_DBG, S_WS = 32, 34, 36, 38, 40, 42
SRD_A, SRD_W, SRD_O, SRD_X = 44, 48, 52, 56
S_W, S_WM, S_WN, S_LDSW = 60, 61, 62, 63
S_OFFA, S_OFFW, S_WSTEP, S_CNT = 64, 65, 66, 67
S_T0, S_T1, S_T2, S_T3 = 68, 69, 70, 71
S_MT, S_NT, S_LDW = 72, 73, 74
S_T4, S_T5, S_T6, S_T7 = 76, 77, 78, 79

V_L = 1
V_ARD = 2
V_WRD = 4
V_ADMA = 8
V_WDMA = 12
V_AF = 16
V_WF = 48
V_TMP = 80
V_ACC = 128

def acc(mb, nb):
    return V_ACC + (mb * 4 + nb) * 4

def load_args(a):
    a("s_load_dwordx16 s[16:31], s[0:1], 0")
    a("s_load_dwordx8 s[32:39], s[0:1], 64")
    a("s_load_dwordx4 s[40:43], s[0:1], 96")

def make_srd(a, srd, base, off_sreg_or_imm, total):
    if isinstance(off_sreg_or_imm, int):
        off = off_sreg_or_imm
        a(f"s_add_u32 s{srd}, s{base}, {off}")
        a(f"s_addc_u32 s{srd+1}, s{base+1}, 0")
        a(f"s_mov_b32 s{srd+2}, {total - off}")
    else:
        off = off_sreg_or_imm
        a(f"s_add_u32 s{srd}, s{base}, {off}")
        a(f"s_addc_u32 s{srd+1}, s{base+1}, 0")
        a(f"s_sub_u32 s{srd+2}, {total}, {off}")
    a(f"s_and_b32 s{srd+1}, s{srd+1}, 0xffff")
    a(f"s_mov_b32 s{srd+3}, 0x00020000")

def wave_ids(a):
    a(f"v_and_b32 v{V_L}, 63, v0")
    a("v_lshrrev_b32 v2, 6, v0")
    a("s_nop 0")
    a(f"v_readfirstlane_b32 s{S_W}, v2")
    a("s_nop 3")
    a(f"s_lshr_b32 s{S_WM}, s{S_W}, 2")
    a(f"s_and_b32 s{S_WN}, s{S_W}, 3")
    a(f"s_lshl_b32 s{S_LDSW}, s{S_W}, 12")

def gemm_addrs(a, lda, ldw):
    T = V_TMP
    L = V_L
    a(f"v_lshrrev_b32 v{T}, 3, v{L}")
    a(f"v_lshrrev_b32 v{T+1}, 4, v{L}")
    a(f"v_and_b32 v{T+2}, 7, v{L}")
    a(f"v_xor_b32 v{T+2}, v{T+2}, v{T+1}")
    a(f"v_lshlrev_b32 v{T+2}, 4, v{T+2}")
    a(f"v_xor_b32 v{T+3}, 64, v{T+2}")
    a(f"s_lshl_b32 s{S_T0}, s{S_W}, 5")
    a(f"v_add_u32 v{T}, s{S_T0}, v{T}")
    if isinstance(lda, int):
        a(f"s_mov_b32 s{S_T1}, {lda}")
        ldas = f"s{S_T1}"
    else:
        ldas = lda
    a(f"v_mul_lo_u32 v{T}, v{T}, {ldas}")
    a(f"s_lshl_b32 s{S_T2}, {ldas}, 3")
    for q in range(4):
        a(f"v_add_u32 v{V_ADMA+q}, v{T}, v{T+2+(q&1)}")
        if q < 3:
            a(f"v_add_u32 v{T}, s{S_T2}, v{T}")
    a(f"v_lshrrev_b32 v{T}, 5, v{L}")
    a(f"v_and_b32 v{T+2}, 31, v{L}")
    a(f"v_lshlrev_b32 v{T+3}, 1, v{T}")
    a(f"v_xor_b32 v{T+2}, v{T+2}, v{T+3}")
    a(f"s_and_b32 s{S_T0}, s{S_W}, 1")
    a(f"s_lshl_b32 s{S_T0}, s{S_T0}, 3")
    a(f"v_xor_b32 v{T+2}, s{S_T0}, v{T+2}")
    a(f"v_lshlrev_b32 v{T+2}, 4, v{T+2}")
    a(f"v_xor_b32 v{T+3}, 64, v{T+2}")
    a(f"s_lshl_b32 s{S_T0}, s{S_W}, 3")
    a(f"v_add_u32 v{T}, s{S_T0}, v{T}")
    if isinstance(ldw, int):
        a(f"s_mov_b32 s{S_T1}, {ldw}")
        ldws = f"s{S_T1}"
    else:
        ldws = ldw
    a(f"v_mul_lo_u32 v{T}, v{T}, {ldws}")
    a(f"s_lshl_b32 s{S_T2}, {ldws}, 1")
    a(f"s_lshl_b32 s{S_WSTEP}, {ldws}, 6")
    for q in range(4):
        a(f"v_add_u32 v{V_WDMA+q}, v{T}, v{T+2+(q&1)}")
        if q < 3:
            a(f"v_add_u32 v{T}, s{S_T2}, v{T}")
    a(f"v_and_b32 v{T}, 15, v{L}")
    a(f"v_lshrrev_b32 v{T+2}, 1, v{T}")
    a(f"v_xor_b32 v{T+2}, v{T+2}, v{T+1}")
    a(f"v_lshlrev_b32 v{T+2}, 4, v{T+2}")
    a(f"s_lshl_b32 s{S_T0}, s{S_WM}, 7")
    a(f"v_add_u32 v{T+3}, s{S_T0}, v{T}")
    a(f"v_lshlrev_b32 v{T+3}, 7, v{T+3}")
    a(f"v_add_u32 v{V_ARD}, v{T+3}, v{T+2}")
    a(f"v_xor_b32 v{V_ARD+1}, 64, v{V_ARD}")
    a(f"v_lshrrev_b32 v{T+2}, 2, v{T}")
    a(f"v_lshlrev_b32 v{T+3}, 3, v{T+1}")
    a(f"v_add_u32 v{T+3}, v{T+3}, v{T+2}")
    a(f"v_lshlrev_b32 v{T+3}, 9, v{T+3}")
    a(f"v_add_u32 v{T+3}, 0x10000, v{T+3}")
    a(f"v_and_b32 v{T+4}, 3, v{L}")
    a(f"v_lshlrev_b32 v{T+4}, 3, v{T+4}")
    a(f"v_add_u32 v{T+3}, v{T+3}, v{T+4}")
    a(f"v_and_b32 v{T+4}, 1, v{T+1}")
    a(f"v_xor_b32 v{T+4}, s{S_WN}, v{T+4}")
    a(f"v_lshlrev_b32 v{T+4}, 7, v{T+4}")
    a(f"v_add_u32 v{T+3}, v{T+3}, v{T+4}")
    for nb in range(4):
        a(f"v_xor_b32 v{T+4}, {nb}, v{T+2}")
        a(f"v_lshlrev_b32 v{T+4}, 5, v{T+4}")
        a(f"v_add_u32 v{V_WRD+nb}, v{T+3}, v{T+4}")

def dma_a(a, stage, q):
    a(f"s_add_u32 m0, s{S_LDSW}, {stage*32768 + q*1024}")
    a("s_nop 0")
    a(f"buffer_load_dwordx4 v{V_ADMA+q}, s[{SRD_A}:{SRD_A+3}], s{S_OFFA} offen lds")

def dma_w(a, stage, q):
    a(f"s_add_u32 m0, s{S_LDSW}, {65536 + stage*32768 + q*1024}")
    a("s_nop 0")
    a(f"buffer_load_dwordx4 v{V_WDMA+q}, s[{SRD_W}:{SRD_W+3}], s{S_OFFW} offen lds")

def dma_advance(a):
    a(f"s_add_u32 s{S_OFFA}, s{S_OFFA}, 128")
    a(f"s_add_u32 s{S_OFFW}, s{S_OFFW}, s{S_WSTEP}")

def rd_a(a, stage, ks, mb):
    a(f"ds_read_b128 {vr(V_AF+4*mb,4)}, v{V_ARD+ks} offset:{stage*32768 + mb*2048}")

def rd_w(a, stage, ks, wset, nb):
    for h in range(2):
        a(f"ds_read_b64_tr_b16 {vr(V_WF+16*wset+4*nb+2*h,2)}, v{V_WRD+nb} offset:{stage*32768 + ks*16384 + h*2048}")

def mfma4(a, mb, wset, swap):
    for nb in range(4):
        d = vr(acc(mb, nb), 4)
        w = vr(V_WF + 16 * wset + 4 * nb, 4)
        x = vr(V_AF + 4 * mb, 4)
        if swap:
            a(f"v_mfma_f32_16x16x32_bf16 {d}, {x}, {w}, {d}")
        else:
            a(f"v_mfma_f32_16x16x32_bf16 {d}, {w}, {x}, {d}")

def kstep(a, p, swap, dma=True, last=False):
    a("s_waitcnt lgkmcnt(4)")
    for mb in range(8):
        if mb == 4:
            a("s_waitcnt lgkmcnt(12)")
        mfma4(a, mb, 0, swap)
        rd_a(a, p, 1, mb)
        if mb < 4:
            rd_w(a, p, 1, 1, mb)
    a("s_waitcnt lgkmcnt(4)")
    mfma4(a, 0, 1, swap)
    mfma4(a, 1, 1, swap)
    if last:
        a("s_waitcnt lgkmcnt(0)")
        for mb in range(2, 8):
            mfma4(a, mb, 1, swap)
        return
    a("s_waitcnt vmcnt(0) lgkmcnt(0)")
    a("s_barrier")
    q = p ^ 1
    rd_a(a, q, 0, 0)
    rd_a(a, q, 0, 1)
    rd_w(a, q, 0, 0, 0)
    rd_w(a, q, 0, 0, 1)
    dl = []
    if dma:
        dl = [(dma_a, i) for i in range(4)] + [(dma_w, i) for i in range(4)]
    for mb in range(2, 8):
        mfma4(a, mb, 1, swap)
        rd_a(a, q, 0, mb)
        if mb < 4:
            rd_w(a, q, 0, 0, mb)
        n = 1 if mb < 4 else (2 if mb < 6 else 1)
        for _ in range(n):
            if dl:
                f, i = dl.pop(0)
                f(a, p, i)
    assert not dl
    if dma:
        dma_advance(a)

def gemm_prologue_dma(a):
    a(f"s_mov_b32 s{S_OFFA}, 0")
    a(f"s_mov_b32 s{S_OFFW}, 0")
    for st in range(2):
        for q in range(4):
            dma_a(a, st, q)
        for q in range(4):
            dma_w(a, st, q)
        dma_advance(a)

def zero_acc(a):
    for i in range(0, 128, 2):
        a(f"v_mov_b64 {vr(V_ACC+i,2)}, 0")

def gemm_main(a, nk, swap, first_wait_vm):
    assert nk % 2 == 0 and nk >= 4
    a(f"s_waitcnt vmcnt({first_wait_vm})")
    a("s_barrier")
    rd_a(a, 0, 0, 0); rd_a(a, 0, 0, 1); rd_w(a, 0, 0, 0, 0); rd_w(a, 0, 0, 0, 1)
    rd_a(a, 0, 0, 2); rd_w(a, 0, 0, 0, 2); rd_a(a, 0, 0, 3); rd_w(a, 0, 0, 0, 3)
    for mb in range(4, 8):
        rd_a(a, 0, 0, mb)
    a(f"s_mov_b32 s{S_CNT}, {(nk-2)//2}")
    lp = a.uid("Lk")
    a.label(lp)
    kstep(a, 0, swap)
    kstep(a, 1, swap)
    a(f"s_sub_u32 s{S_CNT}, s{S_CNT}, 1")
    a(f"s_cmp_lg_u32 s{S_CNT}, 0")
    a(f"s_cbranch_scc1 {lp}")
    kstep(a, 0, swap, dma=False)
    kstep(a, 1, swap, dma=False, last=True)
    a("s_nop 7")
    a("s_nop 1")

def epi_voff_P(a, vdst, ld):
    T = V_TMP
    a(f"v_and_b32 v{T}, 15, v{V_L}")
    if isinstance(ld, int) and (ld & (ld - 1)) == 0:
        a(f"v_lshlrev_b32 v{T}, {ld.bit_length()-1}, v{T}")
    else:
        a(f"s_mov_b32 s{S_T0}, {ld}")
        a(f"v_mul_lo_u32 v{T}, v{T}, s{S_T0}")
    a(f"v_lshrrev_b32 v{T+1}, 4, v{V_L}")
    a(f"v_and_b32 v{T+2}, 1, v{T+1}")
    a(f"v_lshlrev_b32 v{T+2}, 5, v{T+2}")
    a(f"v_lshrrev_b32 v{T+1}, 1, v{T+1}")
    a(f"v_lshlrev_b32 v{T+1}, 4, v{T+1}")
    a(f"v_add3_u32 v{vdst}, v{T}, v{T+1}, v{T+2}")

def epi_P(a, voff, soff, ld, post=None):
    TQ = V_TMP + 16
    k = 0
    for mb in range(8):
        for p in range(2):
            t = TQ + 4 * (k % 8); k += 1
            b0, b1 = acc(mb, 2 * p), acc(mb, 2 * p + 1)
            if post:
                post(a, mb, 2 * p); post(a, mb, 2 * p + 1)
            a(f"v_cvt_pk_bf16_f32 v{t}, v{b0}, v{b0+1}")
            a(f"v_cvt_pk_bf16_f32 v{t+1}, v{b0+2}, v{b0+3}")
            a(f"v_cvt_pk_bf16_f32 v{t+2}, v{b1}, v{b1+1}")
            a(f"v_cvt_pk_bf16_f32 v{t+3}, v{b1+2}, v{b1+3}")
            a("s_nop 1")
            a(f"v_permlane16_swap_b32 v{t}, v{t+2}")
            a(f"v_permlane16_swap_b32 v{t+1}, v{t+3}")
            a("s_nop 0")
            a(f"buffer_store_dwordx4 {vr(t,4)}, v{voff}, s[{SRD_O}:{SRD_O+3}], s{soff} offen offset:{p*64}")
        if mb < 7:
            a(f"s_add_u32 s{soff}, s{soff}, {16*ld}")

def epi_V(a, voff, soff):
    TQ = V_TMP + 16
    k = 0
    for nb in range(4):
        for mp in range(4):
            t = TQ + 4 * (k % 8); k += 1
            b0, b1 = acc(2 * mp, nb), acc(2 * mp + 1, nb)
            a(f"v_cvt_pk_bf16_f32 v{t}, v{b0}, v{b0+1}")
            a(f"v_cvt_pk_bf16_f32 v{t+1}, v{b0+2}, v{b0+3}")
            a(f"v_cvt_pk_bf16_f32 v{t+2}, v{b1}, v{b1+1}")
            a(f"v_cvt_pk_bf16_f32 v{t+3}, v{b1+2}, v{b1+3}")
            a("s_nop 1")
            a(f"v_permlane32_swap_b32 v{t}, v{t+2}")
            a(f"v_permlane32_swap_b32 v{t+1}, v{t+3}")
            a("s_nop 0")
            a(f"buffer_store_dwordx4 {vr(t,4)}, v{voff}, s[{SRD_O}:{SRD_O+3}], s{soff} offen offset:{mp*64}")
        if nb < 3:
            a(f"s_add_u32 s{soff}, s{soff}, 4096")

def wave_sum(a, v, t):
    for ctl in ("quad_perm:[1,0,3,2]", "quad_perm:[2,3,0,1]", "row_half_mirror", "row_mirror"):
        a("s_nop 1")
        a(f"v_add_f32_dpp v{v}, v{v}, v{v} {ctl} row_mask:0xf bank_mask:0xf")
    a("s_nop 1")
    for j in range(4):
        a(f"v_readlane_b32 s{S_T4+j}, v{v}, {16*j}")
    a("s_nop 2")
    a(f"v_mov_b32 v{v}, s{S_T4}")
    for j in range(1, 4):
        a(f"v_add_f32 v{v}, s{S_T4+j}, v{v}")

def bf16_round(a, v):
    a(f"v_cvt_pk_bf16_f32 v{v}, v{v}, v{v}")
    a(f"v_lshlrev_b32 v{v}, 16, v{v}")

def layernorm_load(a):
    R = V_TMP + 24
    a(f"s_lshl_b32 s{S_T0}, s2, 3")
    a(f"s_add_u32 s{S_T0}, s{S_T0}, s{S_W}")
    a(f"s_lshl_b32 s{S_T3}, s{S_T0}, 11")
    a(f"v_lshlrev_b32 v{V_TMP+23}, 4, v{V_L}")
    a(f"buffer_load_dwordx4 {vr(R,4)}, v{V_TMP+23}, s[{SRD_X}:{SRD_X+3}], s{S_T3} offen")
    a(f"buffer_load_dwordx4 {vr(R+4,4)}, v{V_TMP+23}, s[{SRD_X}:{SRD_X+3}], s{S_T3} offen offset:1024")

def layernorm_compute(a):
    R = V_TMP + 24
    X = V_AF
    S = V_AF + 16
    M = V_AF + 17
    Q = V_AF + 18
    D = V_AF + 19
    for j in range(8):
        a(f"v_lshlrev_b32 v{X+2*j}, 16, v{R+j}")
        a(f"v_and_b32 v{X+2*j+1}, 0xffff0000, v{R+j}")
    a(f"v_add_f32 v{S}, v{X}, v{X+1}")
    for j in range(2, 16):
        a(f"v_add_f32 v{S}, v{S}, v{X+j}")
    wave_sum(a, S, D)
    a(f"v_mul_f32 v{M}, {f32(1.0/1024)}, v{S}")
    a(f"v_mov_b32 v{Q}, 0")
    for j in range(16):
        a(f"v_sub_f32 v{D}, v{X+j}, v{M}")
        a(f"v_fmac_f32 v{Q}, v{D}, v{D}")
    wave_sum(a, Q, D)
    a(f"v_mul_f32 v{Q}, {f32(1.0/1024)}, v{Q}")
    bf16_round(a, M)
    bf16_round(a, Q)
    a(f"v_add_f32 v{Q}, {f32(1e-5)}, v{Q}")
    bf16_round(a, Q)
    a(f"v_sqrt_f32 v{Q}, v{Q}")
    a("s_nop 0")
    bf16_round(a, Q)
    a(f"v_rcp_f32 v{S}, v{Q}")
    a("s_nop 0")
    for j in range(16):
        a(f"v_sub_f32 v{X+j}, v{X+j}, v{M}")
        bf16_round(a, X + j)
        a(f"v_mul_f32 v{D}, v{X+j}, v{S}")
        a(f"v_fma_f32 v{X+j}, -v{D}, v{Q}, v{X+j}")
        a(f"v_fma_f32 v{X+j}, v{X+j}, v{S}, v{D}")
    for j in range(8):
        a(f"v_cvt_pk_bf16_f32 v{R+j}, v{X+2*j}, v{X+2*j+1}")
    a(f"buffer_store_dwordx4 {vr(R,4)}, v{V_TMP+23}, s[{SRD_O}:{SRD_O+3}], s{S_T3} offen")
    a(f"buffer_store_dwordx4 {vr(R+4,4)}, v{V_TMP+23}, s[{SRD_O}:{SRD_O+3}], s{S_T3} offen offset:1024")

def kstart(a, name):
    a.raw(".text")
    a.raw(f".globl {name}")
    a.raw(".p2align 8")
    a.raw(f".type {name},@function")
    a.label(name)

def gen_kv(a):
    name = "kv_kernel"
    kstart(a, name)
    a("s_cmp_ge_u32 s2, 256")
    a("s_cbranch_scc1 kv_end")
    load_args(a)
    wave_ids(a)
    a(f"s_and_b32 s{S_T0}, s2, 7")
    a(f"s_lshr_b32 s{S_T1}, s2, 3")
    a(f"s_and_b32 s{S_MT}, s{S_T1}, 7")
    a(f"s_lshr_b32 s{S_T1}, s{S_T1}, 3")
    a(f"s_lshl_b32 s{S_NT}, s{S_T0}, 2")
    a(f"s_add_u32 s{S_NT}, s{S_NT}, s{S_T1}")
    a("s_waitcnt lgkmcnt(0)")
    make_srd(a, SRD_X, S_X, 0, 4 * MB)
    layernorm_load(a)
    a(f"s_lshl_b32 s{S_T0}, s{S_MT}, 18")
    make_srd(a, SRD_A, S_CKV, f"s{S_T0}", 2 * MB)
    a(f"s_cmp_lt_u32 s{S_NT}, 16")
    a(f"s_cselect_b32 s{S_T4}, s{S_WUK}, s{S_WUV}")
    a(f"s_cselect_b32 s{S_T5}, s{S_WUK+1}, s{S_WUV+1}")
    a(f"s_and_b32 s{S_T6}, s{S_NT}, 15")
    a(f"s_lshl_b32 s{S_T0}, s{S_T6}, 9")
    make_srd(a, SRD_W, S_T4, f"s{S_T0}", 4 * MB)
    gemm_addrs(a, 1024, 8192)
    gemm_prologue_dma(a)
    zero_acc(a)
    make_srd(a, SRD_O, S_WS, WS_XN, WS_XN + 4 * MB)
    a("s_waitcnt vmcnt(16)")
    layernorm_compute(a)
    a(f"s_and_b32 s{S_T6}, s{S_NT}, 15")
    a(f"s_lshl_b32 s{S_T0}, s{S_T6}, 1")
    a(f"s_lshr_b32 s{S_T1}, s{S_WN}, 1")
    a(f"s_add_u32 s{S_T0}, s{S_T0}, s{S_T1}")
    a(f"s_lshl_b32 s{S_T7}, s{S_T0}, 19")
    a(f"s_cmp_lt_u32 s{S_NT}, 16")
    a("s_cbranch_scc0 kv_vpath")
    gemm_main(a, 8, False, 10)
    make_srd(a, SRD_O, S_WS, WS_K, WS_K + 16 * MB)
    epi_voff_P(a, V_TMP + 8, 256)
    a(f"s_lshl_b32 s{S_T0}, s{S_MT}, 16")
    a(f"s_add_u32 s{S_T7}, s{S_T7}, s{S_T0}")
    a(f"s_lshl_b32 s{S_T0}, s{S_WM}, 15")
    a(f"s_add_u32 s{S_T7}, s{S_T7}, s{S_T0}")
    a(f"s_and_b32 s{S_T0}, s{S_WN}, 1")
    a(f"s_lshl_b32 s{S_T0}, s{S_T0}, 7")
    a(f"s_add_u32 s{S_T7}, s{S_T7}, s{S_T0}")
    epi_P(a, V_TMP + 8, S_T7, 256)
    a("s_endpgm")
    a.label("kv_vpath")
    gemm_main(a, 8, True, 10)
    make_srd(a, SRD_O, S_WS, WS_V, WS_V + 16 * MB)
    T = V_TMP
    a(f"v_and_b32 v{T}, 15, v{V_L}")
    a(f"v_lshlrev_b32 v{T}, 8, v{T}")
    a(f"v_lshrrev_b32 v{T+1}, 4, v{V_L}")
    a(f"v_lshlrev_b32 v{T+1}, 4, v{T+1}")
    a(f"v_add_u32 v{T+8}, v{T}, v{T+1}")
    a(f"s_lshl_b32 s{S_T0}, s{S_MT}, 16")
    a(f"s_add_u32 s{S_T7}, s{S_T7}, s{S_T0}")
    a(f"s_lshl_b32 s{S_T0}, s{S_WM}, 15")
    a(f"s_add_u32 s{S_T7}, s{S_T7}, s{S_T0}")
    a(f"s_and_b32 s{S_T0}, s{S_WN}, 1")
    a(f"s_lshl_b32 s{S_T0}, s{S_T0}, 14")
    a(f"s_add_u32 s{S_T7}, s{S_T7}, s{S_T0}")
    epi_V(a, T + 8, S_T7)
    a.label("kv_end")
    a("s_endpgm")
    return name

V_BIAS = V_TMP + 0
def gelu_post(a, mb, nb):
    c0 = -2.0 * math.sqrt(2.0 / math.pi) * math.log2(math.e)
    c1 = c0 * 0.044715
    t0, t1 = V_AF, V_AF + 1
    for r in range(4):
        x = acc(mb, nb) + r
        t = V_AF + 2 * r
        a(f"v_add_f32 v{x}, v{x}, v{V_BIAS+4*nb+r}")
        a(f"v_mul_f32 v{t}, v{x}, v{x}")
        a(f"v_fma_f32 v{t}, v{t}, s{S_T4}, v{V_AF+8}")
        a(f"v_mul_f32 v{t}, v{t}, v{x}")
        a(f"v_exp_f32 v{t}, v{t}")
    for r in range(4):
        t = V_AF + 2 * r
        a(f"v_add_f32 v{t}, 1.0, v{t}")
        a(f"v_rcp_f32 v{t}, v{t}")
    for r in range(4):
        x = acc(mb, nb) + r
        t = V_AF + 2 * r
        a(f"v_mul_f32 v{x}, v{x}, v{t}")

def gen_qh(a):
    name = "qh_kernel"
    kstart(a, name)
    a("s_cmp_ge_u32 s2, 240")
    a("s_cbranch_scc1 qh_end")
    load_args(a)
    wave_ids(a)
    a(f"s_and_b32 s{S_T0}, s2, 7")
    a(f"s_lshr_b32 s{S_T1}, s2, 3")
    a(f"s_mul_i32 s{S_T0}, s{S_T0}, 30")
    a(f"s_add_u32 s{S_T0}, s{S_T0}, s{S_T1}")
    a(f"s_and_b32 s{S_MT}, s{S_T0}, 7")
    a(f"s_lshr_b32 s{S_NT}, s{S_T0}, 3")
    a("s_waitcnt lgkmcnt(0)")
    a(f"s_lshl_b32 s{S_T0}, s{S_MT}, 19")
    a(f"s_add_u32 s{S_T0}, s{S_T0}, {WS_XN}")
    make_srd(a, SRD_A, S_WS, f"s{S_T0}", WS_XN + 4 * MB)
    a(f"s_cmp_lt_u32 s{S_NT}, 16")
    a(f"s_cselect_b32 s{S_T4}, s{S_WQ}, s{S_W1}")
    a(f"s_cselect_b32 s{S_T5}, s{S_WQ+1}, s{S_W1+1}")
    a(f"s_mov_b32 s{S_LDW}, 7168")
    a(f"s_cselect_b32 s{S_LDW}, 8192, s{S_LDW}")
    a(f"s_lshl_b32 s{S_T7}, s{S_LDW}, 10")
    a(f"s_and_b32 s{S_T6}, s{S_NT}, 15")
    a(f"s_lshl_b32 s{S_T0}, s{S_T6}, 9")
    make_srd(a, SRD_W, S_T4, f"s{S_T0}", f"s{S_T7}")
    make_srd(a, SRD_X, S_B1, 0, 7168)
    T = V_TMP
    a(f"v_lshrrev_b32 v{T+40}, 4, v{V_L}")
    a(f"v_lshlrev_b32 v{T+40}, 3, v{T+40}")
    a(f"s_lshl_b32 s{S_T1}, s{S_WN}, 7")
    a(f"s_add_u32 s{S_T1}, s{S_T1}, s{S_T0}")
    for nb in range(4):
        a(f"buffer_load_dwordx2 {vr(T+32+2*nb,2)}, v{T+40}, s[{SRD_X}:{SRD_X+3}], s{S_T1} offen offset:{32*nb}")
    gemm_addrs(a, 2048, f"s{S_LDW}")
    gemm_prologue_dma(a)
    zero_acc(a)
    gemm_main(a, 16, False, 8)
    a(f"s_cmp_lt_u32 s{S_NT}, 16")
    a("s_cbranch_scc0 qh_hpath")
    make_srd(a, SRD_O, S_WS, WS_Q, WS_Q + 16 * MB)
    epi_voff_P(a, V_TMP + 8, 256)
    a(f"s_lshl_b32 s{S_T0}, s{S_NT}, 1")
    a(f"s_lshr_b32 s{S_T1}, s{S_WN}, 1")
    a(f"s_add_u32 s{S_T0}, s{S_T0}, s{S_T1}")
    a(f"s_lshl_b32 s{S_T7}, s{S_T0}, 19")
    a(f"s_lshl_b32 s{S_T0}, s{S_MT}, 16")
    a(f"s_add_u32 s{S_T7}, s{S_T7}, s{S_T0}")
    a(f"s_lshl_b32 s{S_T0}, s{S_WM}, 15")
    a(f"s_add_u32 s{S_T7}, s{S_T7}, s{S_T0}")
    a(f"s_and_b32 s{S_T0}, s{S_WN}, 1")
    a(f"s_lshl_b32 s{S_T0}, s{S_T0}, 7")
    a(f"s_add_u32 s{S_T7}, s{S_T7}, s{S_T0}")
    epi_P(a, V_TMP + 8, S_T7, 256)
    a("s_endpgm")
    a.label("qh_hpath")
    make_srd(a, SRD_O, S_WS, WS_ACT2, WS_ACT2 + 2048 * LD_ACT2)
    epi_voff_P(a, V_WF, LD_ACT2)
    for nb in range(4):
        for j in range(2):
            a(f"v_lshlrev_b32 v{V_BIAS+4*nb+2*j}, 16, v{T+32+2*nb+j}")
            a(f"v_and_b32 v{V_BIAS+4*nb+2*j+1}, 0xffff0000, v{T+32+2*nb+j}")
    c0 = -2.0 * math.sqrt(2.0 / math.pi) * math.log2(math.e)
    c1 = c0 * 0.044715
    a(f"s_mov_b32 s{S_T4}, {f32(c1)}")
    a(f"v_mov_b32 v{V_AF+8}, {f32(c0)}")
    a(f"s_lshl_b32 s{S_T0}, s{S_MT}, 8")
    a(f"s_lshl_b32 s{S_T1}, s{S_WM}, 7")
    a(f"s_add_u32 s{S_T0}, s{S_T0}, s{S_T1}")
    a(f"s_mul_i32 s{S_T7}, s{S_T0}, {LD_ACT2}")
    a(f"s_lshl_b32 s{S_T0}, s{S_NT}, 9")
    a(f"s_add_u32 s{S_T7}, s{S_T7}, s{S_T0}")
    a(f"s_lshl_b32 s{S_T0}, s{S_WN}, 7")
    a(f"s_add_u32 s{S_T7}, s{S_T7}, s{S_T0}")
    epi_P(a, V_WF, S_T7, LD_ACT2, post=gelu_post)
    a.label("qh_end")
    a("s_endpgm")
    return name

def main():
    a = Asm()
    hdr = open(f"cdna_kernels/{NAME}.s.ref").read().split("\n")
    head = [l for l in hdr if l.startswith(";") and "@launch" not in l and "Override launch" not in l and "grid=ceil" not in l]
    launches = [
        ("kv_kernel", 256, 512, 131072),
        ("qh_kernel", 240, 512, 131072),
    ]
    out = list(head)
    for k, g, b, lds in launches:
        out.append(f"; @launch kernel={k} grid=({g},1,1) block=({b},1,1) lds={lds}")
    out.append('.amdgcn_target "amdgcn-amd-amdhsa--gfx950"')
    gen_kv(a)
    gen_qh(a)
    out.append(a.text())
    out.append('.section .rodata,"a"')
    out.append(kernel_desc("kv_kernel", 256, 96))
    out.append(kernel_desc("qh_kernel", 256, 96))
    open(f"cdna_kernels/{NAME}.s", "w").write("\n".join(out))

if __name__ == "__main__":
    main()
```

```python
import math, os
from asmlib import *
from gen_common import *

AV_L = 1
AV_DK = 2
AV_DV = 3
AV_KA = 4
AV_VA = 6
AV_M = 10
AV_LS = 11
AV_T = 12
AV_Q = 16
AV_S = 48
AV_P = 80
AV_F = 96
AV_O = 128
AV_QN = 192
AV_X = 224
AV_THR = 232
AV_AL = 233
AV_LSV = 234
AV_L2 = 235
AV_OV = 236
AV_PFV = 238
AV_DL = 237
AV_NM = 240
SLOT = 17408
GRP = 4 * SLOT
RESC_T = float(os.environ.get("RESC_T", "32"))

SA_H, SA_PI, SA_QA, SA_QB = 72, 73, 74, 75
SA_KOFF, SA_VOFF, SA_I, SA_M0 = 64, 65, 66, 67
SA_KH, SA_QW, SA_C = 61, 62, 80
SA_DK, SA_DV = 9, 10
SA_WK, SA_WV = 4, 5
SA_KREM, SA_VREM = 6, 63
SA_XK, SA_XV, SA_SWB = 7, 8, 11
SA_D0 = 96
SA_SW = 97
SA_FLAG = 98
SA_FORCE = 100
SA_NMZ = 73
SA_OB = 99
SRD_K, SRD_V, SRD_Q = 44, 48, 56
ATT_EXP = os.environ.get("AEXP", "")

def dma_k(q):
    return [f"s_add_u32 m0, s{SA_WK}, {64*q}", "s_nop 0",
            f"buffer_load_dwordx4 v{AV_DK}, s[{SRD_K}:{SRD_K+3}], s{SA_KOFF} offen offset:{q*1024} lds"]
def dma_v(q):
    return [f"s_add_u32 m0, s{SA_WV}, {64*q}", "s_nop 0",
            f"buffer_load_dwordx4 v{AV_DV}, s[{SRD_V}:{SRD_V+3}], s{SA_VOFF} offen offset:{q*1024} lds"]
def adv(off, w, x, rem):
    return [f"s_add_u32 s{off}, s{off}, 16384",
            f"s_xor_b32 s{w}, s{w}, s{x}",
            f"s_sub_u32 s{rem}, s{rem}, 1",
            f"s_cmp_eq_u32 s{rem}, 0",
            f"s_cselect_b32 s{off}, 0, s{off}"]
def adv_k(): return adv(SA_KOFF, SA_WK, SA_XK, SA_KREM)
def adv_v(): return adv(SA_VOFF, SA_WV, SA_XV, SA_VREM)

SA_PF = 81
def wpf():
    if "nowpf" in ATT_EXP: return []
    return [f"s_cmp_lt_u32 s{SA_I}, 4",
            f"s_cselect_b32 s{SRD_Q}, s{S_WO}, s{S_W2}",
            f"s_cselect_b32 s{SRD_Q+1}, s{S_WO+1}, s{S_W2+1}",
            f"s_mov_b32 s{SRD_Q+2}, {7*MB}",
            f"s_cselect_b32 s{SRD_Q+2}, {8*MB}, s{SRD_Q+2}",
            f"s_and_b32 s{SRD_Q+1}, s{SRD_Q+1}, 0xffff",
            f"s_mov_b32 s{SRD_Q+3}, 0x00020000",
            f"s_cmp_lt_u32 s{SA_I}, 8",
            f"s_cselect_b32 s{SRD_Q+2}, s{SRD_Q+2}, 0",
            f"s_and_b32 s{S_T0}, s{SA_I}, 3",
            f"s_lshl_b32 s{S_T0}, s{S_T0}, 21",
            f"s_add_u32 s{S_T0}, s{S_T0}, s{SA_PF}",
            f"s_lshl_b32 s{S_T1}, s{S_W}, 10",
            f"s_add_u32 m0, s{S_T1}, {2*GRP}",
            "s_nop 0",
            f"buffer_load_dwordx4 v{AV_PFV}, s[{SRD_Q}:{SRD_Q+3}], s{S_T0} offen lds"]

def load_q(a, dst, sqt):
    a(f"s_lshl_b32 s{S_T0}, s{sqt}, 15")
    a(f"s_lshl_b32 s{S_T1}, s{SA_QW}, 13")
    a(f"s_add_u32 s{S_T0}, s{S_T0}, s{S_T1}")
    a(f"s_add_u32 s{S_T1}, s{S_T0}, 4096")
    a(f"v_lshlrev_b32 v{AV_T}, 4, v{AV_L}")
    for ds in range(8):
        a(f"buffer_load_dwordx4 {vr(dst+4*ds,4)}, v{AV_T}, s[{SRD_Q}:{SRD_Q+3}], s{S_T0 if ds < 4 else S_T1} offen offset:{1024*(ds&3)}")

KORD = [(kb, ds) for kb in range(2) for ds in range(8)]
VORD = [(ks, b) for ks in range(4) for b in range(4)]
def rdk(i, slot):
    kb, ds = KORD[i]
    return f"ds_read_b128 {vr(AV_F+4*slot,4)}, v{AV_KA+(ds&1)} offset:{kb*8704 + (ds>>1)*64}"
def rdv(i, slot):
    ks, b = VORD[i]
    return f"ds_read_b128 {vr(AV_F+4*slot,4)}, v{AV_VA+2*(b>>1)+(ks&1)} offset:{(b&1)*4352 + (ks>>1)*64}"
def mf(t, i, slot):
    f = vr(AV_F + 4 * slot, 4)
    if t == "k":
        kb, ds = KORD[i]
        s = vr(AV_S + 16 * kb, 16)
        return f"v_mfma_f32_32x32x16_bf16 {s}, {f}, {vr(AV_Q+4*ds,4)}, {vr(AV_NM,16) if ds == 0 else s}"
    ks, b = VORD[i]
    o = vr(AV_O + 16 * b, 16)
    return f"v_mfma_f32_32x32x16_bf16 {o}, {f}, {vr(AV_P+4*ks,4)}, {o}"

def mask_code(a, h):
    T = AV_T; S = AV_S + 16 * h
    lsk = a.uid("Lnomask")
    a(f"s_sub_u32 s{S_T0}, s{SA_I}, s{SA_D0}")
    a(f"s_cmp_gt_u32 s{S_T0}, 1")
    a(f"s_cbranch_scc1 {lsk}")
    a(f"s_lshl_b32 s{S_T0}, s{S_T0}, 6")
    a(f"v_subrev_u32 v{T+2}, s{S_T0}, v{AV_THR}")
    a(f"v_mov_b32 v{T+3}, 0xff800000")
    prs = ["s[68:69]", "s[70:71]", "s[76:77]", "vcc"]
    for c in range(0, 16, 4):
        for j in range(4):
            e = c + j
            kc = 32 * h + 8 * (e >> 2) + (e & 3)
            a(f"v_cmp_le_i32 {prs[j]}, {kc}, v{T+2}")
        for j in range(4):
            e = c + j
            a(f"v_cndmask_b32 v{S+e}, v{T+3}, v{S+e}, {prs[j]}")
    a.label(lsk)

def finalize_store(a, lreg, nblk, sqt, final):
    X = AV_X; T = AV_T; L = AV_L
    a(f"s_lshl_b32 s{S_T0}, s{sqt}, 7")
    a(f"s_mul_i32 s{S_T0}, s{S_T0}, {LD_ACT2}")
    a(f"s_add_u32 s{S_T0}, s{S_T0}, s{SA_OB}")
    a(f"s_lshl_b32 s{S_T1}, s{SA_KH}, 7")
    a(f"s_add_u32 s{S_T2}, s{S_T0}, s{S_T1}")
    a(f"s_sub_u32 s{S_T3}, 128, s{S_T1}")
    a(f"s_add_u32 s{S_T3}, s{S_T3}, s{S_T0}")
    if final:
        a(f"s_lshl_b32 s{S_T0}, s{S_W}, 12")
        a(f"s_add_u32 s{S_T0}, s{S_T0}, {2*SLOT}")
    else:
        a(f"s_lshl_b32 s{S_T0}, s{SA_QW}, 12")
        a(f"s_add_u32 s{S_T0}, s{S_T0}, {2*GRP + 8192}")
    a(f"v_and_b32 v{T}, 31, v{L}")
    a(f"v_and_b32 v{T+1}, 7, v{L}")
    a(f"v_lshrrev_b32 v{T+2}, 5, v{L}")
    a(f"v_xor_b32 v{T+1}, v{T+1}, v{T+2}")
    a(f"v_lshlrev_b32 v{T+1}, 4, v{T+1}")
    a(f"v_lshlrev_b32 v{T}, 7, v{T}")
    a(f"v_add_u32 v{T}, s{S_T0}, v{T}")
    a(f"v_lshrrev_b32 v{T+2}, 3, v{L}")
    a(f"v_and_b32 v{T+3}, 7, v{L}")
    a(f"v_xor_b32 v{T+3}, v{T+3}, v{T+2}")
    a(f"v_lshlrev_b32 v{T+3}, 4, v{T+3}")
    a(f"v_lshl_add_u32 v{T+3}, v{T+2}, 7, v{T+3}")
    a(f"v_add_u32 v{T+3}, s{S_T0}, v{T+3}")
    for half in range(nblk // 2):
        k = 0
        for b in range(2 * half, 2 * half + 2):
            for aa in range(2):
                o = AV_O + 16 * b + 8 * aa
                t = X + 4 * (k & 1); k += 1
                if lreg is not None:
                    for e in range(8):
                        a(f"v_mul_f32 v{o+e}, v{o+e}, v{lreg}")
                a(f"v_cvt_pk_bf16_f32 v{t}, v{o}, v{o+1}")
                a(f"v_cvt_pk_bf16_f32 v{t+1}, v{o+2}, v{o+3}")
                a(f"v_cvt_pk_bf16_f32 v{t+2}, v{o+4}, v{o+5}")
                a(f"v_cvt_pk_bf16_f32 v{t+3}, v{o+6}, v{o+7}")
                a(f"v_xor_b32 v{T+2}, {(4*(b&1) + 2*aa)*16}, v{T+1}")
                a(f"v_add_u32 v{T+2}, v{T+2}, v{T}")
                a(f"v_permlane32_swap_b32 v{t}, v{t+2}")
                a(f"v_permlane32_swap_b32 v{t+1}, v{t+3}")
                a("s_nop 0")
                a(f"ds_write_b128 v{T+2}, {vr(t,4)}")
        a("s_waitcnt lgkmcnt(0)")
        ob = AV_O + 32 * half
        for j in range(4):
            a(f"ds_read_b128 {vr(ob+4*j,4)}, v{T+3} offset:{j*1024}")
        so = S_T2 if half == 0 else S_T3
        for j in range(4):
            a(f"s_waitcnt lgkmcnt({3-j})")
            a(f"buffer_store_dwordx4 {vr(ob+4*j,4)}, v{AV_OV}, s[{SRD_O}:{SRD_O+3}], s{so} offen sc0 sc1")
            if j < 3: a(f"s_add_u32 s{so}, s{so}, {8*LD_ACT2}")
    a("s_nop 1")

ACC = "acc" in ATT_EXP
def acc_stamp(a, idx):
    if not ACC: return
    a("s_memtime s[86:87]")
    a("s_waitcnt lgkmcnt(0)")
    if idx is not None:
        a(f"s_sub_u32 s87, s86, s101")
        a(f"s_add_u32 s{89+idx}, s{89+idx}, s87")
    a("s_mov_b32 s101, s86")

def stage(a, h, qk, pv, sm, dma, first=False):
    T = AV_T; S = AV_S + 16 * h; SN = AV_S + 16 * (h ^ 1)
    if "nodma" in ATT_EXP: dma = False
    o = h ^ 1
    seq = ([("k", 8 * o + i) for i in range(8)] if qk else []) + ([("v", 8 * o + i) for i in range(8)] if pv else [])
    n = len(seq)
    nrd = [0]
    def rd():
        j = nrd[0]
        if j < n:
            t, i = seq[j]
            if "noread" not in ATT_EXP: a(rdk(i, j % 8) if t == "k" else rdv(i, j % 8))
            nrd[0] += 1
    nmf = [0]
    def mfma():
        j = nmf[0]
        t, i = seq[j]
        if "noread" not in ATT_EXP: a(f"s_waitcnt lgkmcnt({nrd[0]-1-j})")
        a(mf(t, i, j % 8))
        nmf[0] += 1
        rd()
        if "prog" in ATT_EXP and nmf[0] == 8: a(f"s_setprio {2*h}")
    if "prog" in ATT_EXP: a(f"s_setprio {2*h+1}")
    for _ in range(8): rd()
    dl = []
    if dma:
        if h == 1:
            dl = [dma_v(q) for q in range(4)]; dl[-1] = dl[-1] + adv_v()
            dl += [dma_k(q) for q in range(4)]; dl[-1] = dl[-1] + adv_k() + wpf()
    def one_dma():
        if dl:
            for x in dl.pop(0): a(x)
    lf = a.uid("Lnoflag"); lf2 = a.uid("Lfin"); lf3 = a.uid("Lfixs")
    if not first:
        a(f"s_cmp_eq_u32 s{SA_FLAG}, 0")
        a(f"s_cbranch_scc1 {lf}")
        a("s_nop 7")
        a("s_nop 3")
        a(f"s_cmp_eq_u32 s{SA_FLAG}, 2")
        a(f"s_cbranch_scc1 {lf2}")
        for e in range(64):
            a(f"v_mul_f32 v{AV_O+e}, v{AV_O+e}, v{AV_AL}")
        a(f"s_branch {lf3}")
        a.label(lf2)
        a(f"v_mov_b32 v{T+2}, v{AV_LSV}")
        a("s_nop 1")
        a(f"v_permlane32_swap_b32 v{AV_LSV}, v{T+2}")
        a("s_nop 0")
        a(f"v_add_f32 v{AV_LSV}, v{AV_LSV}, v{T+2}")
        a(f"v_rcp_f32 v{AV_LSV}, v{AV_LSV}")
        a("s_nop 0")
        finalize_store(a, AV_LSV, 4, SA_QB, False)
        for e in range(0, 64, 2):
            a(f"v_mov_b64 {vr(AV_O+e,2)}, 0")
        a.label(lf3)
        if sm:
            for e in range(16):
                a(f"v_sub_f32 v{S+e}, v{S+e}, v{AV_DL}")
        a(f"s_mov_b32 s{SA_FLAG}, 0")
        a.label(lf)
    if h == 1 and qk:
        lq = a.uid("Lnoq")
        a(f"s_add_u32 s{S_T0}, s{SA_I}, 1")
        a(f"s_cmp_lg_u32 s{S_T0}, s{SA_SW}")
        a(f"s_cbranch_scc1 {lq}")
        for e in range(0, 32, 2):
            a(f"v_mov_b64 {vr(AV_Q+e,2)}, {vr(AV_QN+e,2)}")
        for e in range(0, 16, 2):
            a(f"v_mov_b64 {vr(AV_NM+e,2)}, 0")
        a(f"s_mov_b32 s{SA_NMZ}, 1")
        a.label(lq)
    if not sm:
        while nmf[0] < n:
            mfma(); one_dma()
        while dl: one_dma()
        return
    a(f"s_mov_b32 s{SA_FORCE}, {1 if first else 0}")
    if h == 0 and not first:
        lsw = a.uid("Lnosw")
        a(f"s_cmp_lg_u32 s{SA_I}, s{SA_SW}")
        a(f"s_cbranch_scc1 {lsw}")
        a(f"v_add_f32 v{AV_LSV}, v{AV_LS}, v{AV_L2}")
        a(f"v_mov_b32 v{AV_M}, 0")
        a(f"v_mov_b32 v{AV_LS}, 0")
        a(f"v_mov_b32 v{AV_L2}, 0")
        a(f"s_mov_b32 s{SA_FLAG}, 2")
        a(f"s_mov_b32 s{SA_FORCE}, 1")
        a(f"s_mov_b32 s{SA_NMZ}, 0")
        a.label(lsw)
    mask_code(a, h)
    fl = [f"v_max3_f32 v{T}, v{S}, v{S+1}, v{S+2}", f"v_max3_f32 v{T+1}, v{S+3}, v{S+4}, v{S+5}"]
    i = 6; k = 0
    while i < 16:
        fl.append(f"v_max3_f32 v{T+k}, v{T+k}, v{S+i}, v{S+i+1}")
        i += 2; k ^= 1
    fl.append(f"v_max_f32 v{T}, v{T}, v{T+1}")
    fl.append(f"v_cmp_lt_f32 vcc, {f32(RESC_T)}, v{T}")
    while fl:
        for _ in range(5):
            if fl: a(fl.pop(0))
        if nmf[0] < min(n, 2): mfma()
    lsk = a.uid("Lnoresc"); lgo = a.uid("Lresc"); lnm = a.uid("Lnonm")
    a(f"s_cmp_lg_u32 s{SA_FORCE}, 0")
    a(f"s_cbranch_scc1 {lgo}")
    a(f"s_cbranch_vccz {lsk}")
    a.label(lgo)
    a(f"v_mov_b32 v{T+1}, v{T}")
    a("s_nop 1")
    a(f"v_permlane32_swap_b32 v{T}, v{T+1}")
    a("s_nop 0")
    a(f"v_max_f32 v{T}, v{T}, v{T+1}")
    a(f"s_cselect_b32 s{S_T0}, 0xff800000, 0")
    a(f"v_max_f32 v{AV_DL}, s{S_T0}, v{T}")
    a(f"v_exp_f32 v{AV_AL}, -v{AV_DL}")
    a(f"v_add_f32 v{AV_M}, v{AV_M}, v{AV_DL}")
    a(f"s_max_u32 s{SA_FLAG}, s{SA_FLAG}, 1")
    a(f"v_min_f32 v{AV_AL}, 1.0, v{AV_AL}")
    for e in range(16):
        a(f"v_sub_f32 v{S+e}, v{S+e}, v{AV_DL}")
    a(f"v_mul_f32 v{AV_LS}, v{AV_LS}, v{AV_AL}")
    a(f"v_mul_f32 v{AV_L2}, v{AV_L2}, v{AV_AL}")
    a(f"s_cmp_lg_u32 s{SA_NMZ}, 0")
    a(f"s_cbranch_scc1 {lnm}")
    a("s_nop 7")
    for e in range(16):
        a(f"v_sub_f32 v{AV_NM+e}, 0, v{AV_M}")
    a(f"s_branch {lsk}")
    a.label(lnm)
    a(f"v_mov_b32 v{AV_DL}, 0")
    a.label(lsk)
    fl = []
    if "noexp" not in ATT_EXP:
        for g in range(2):
            b = S + 8 * g
            for e in range(8):
                fl.append(f"v_exp_f32 v{b+e}, v{b+e}")
            for e in range(0, 8, 2):
                fl.append(f"v_add_f32 v{AV_LS}, v{AV_LS}, v{b+e}")
                fl.append(f"v_add_f32 v{AV_L2}, v{AV_L2}, v{b+e+1}")
            for j in range(4):
                fl.append(f"v_cvt_pk_bf16_f32 v{AV_P+8*h+4*g+j}, v{b+2*j}, v{b+2*j+1}")
    rem = n - nmf[0]
    cost = lambda x: 2.0 if "v_exp" in x else 1.0
    tot = sum(cost(x) for x in fl)
    done = 0.0; k = 0
    while nmf[0] < n or fl:
        if nmf[0] < n:
            mfma(); k += 1
            if k % 2 == 1: one_dma()
        tgt = tot * k / max(rem, 1) if nmf[0] < n else 1e9
        while fl and done + cost(fl[0]) <= tgt + 0.5:
            done += cost(fl[0]); a(fl.pop(0))
    while dl: one_dma()

def toggle(a, regs, sd):
    for r in regs:
        a(f"v_add_u32 v{r}, s{sd}, v{r}")
    a(f"s_sub_u32 s{sd}, 0, s{sd}")

def ctx_flag(a, sqt):
    flag_srd(a, SRD_Q)
    a(f"s_lshl_b32 s{S_T0}, s{sqt}, 5")
    a(f"s_add_u32 s{S_T0}, s{S_T0}, s{SA_H}")
    a(f"s_lshl_b32 s{S_T0}, s{S_T0}, 7")
    a(f"s_add_u32 s{S_T0}, s{S_T0}, {F_CTX}")
    flag_store(a, SRD_Q, S_T0, AV_X)

def attn_ids(a):
    a(f"s_and_b32 s{S_T0}, s2, 7")
    a(f"s_lshr_b32 s{S_T1}, s2, 3")
    a(f"s_and_b32 s{SA_QB}, s{S_T1}, 7")
    a(f"s_lshr_b32 s{S_T1}, s{S_T1}, 3")
    a(f"s_lshl_b32 s{SA_H}, s{S_T0}, 2")
    a(f"s_add_u32 s{SA_H}, s{SA_H}, s{S_T1}")
    a(f"s_sub_u32 s{SA_QA}, 15, s{SA_QB}")

def attn_early(a, vdma=True):
    a(f"s_lshl_b32 s{S_T0}, s{SA_QA}, 1")
    a(f"s_sub_u32 s{S_T0}, s{S_T0}, 15")
    a(f"s_lshl_b32 s{S_T0}, s{S_T0}, 14")
    a(f"s_lshl_b32 s{S_T1}, s{SA_QB}, 1")
    a(f"s_add_u32 s{SA_SWB}, s{S_T1}, 2")
    a(f"s_cmp_eq_u32 s{SA_KH}, 0")
    a(f"s_cselect_b32 s{SA_KOFF}, s{S_T0}, 0")
    a(f"s_cselect_b32 s{SA_KREM}, 99, s{SA_SWB}")
    a(f"s_mov_b32 s{SA_VOFF}, s{SA_KOFF}")
    a(f"s_mov_b32 s{SA_VREM}, s{SA_KREM}")
    a(f"s_lshl_b32 s{S_T2}, s{SA_H}, 19")
    for srd, off in ((SRD_K, WS_K), (SRD_V, WS_V)):
        a(f"s_add_u32 s{S_T3}, s{S_T2}, {off}")
        a(f"s_add_u32 s{srd}, s{S_WS}, s{S_T3}")
        a(f"s_addc_u32 s{srd+1}, s{S_WS+1}, 0")
        a(f"s_and_b32 s{srd+1}, s{srd+1}, 0xffff")
        a(f"s_mov_b32 s{srd+2}, {1<<19}")
        a(f"s_mov_b32 s{srd+3}, 0x00020000")
    T = AV_T; L = AV_L
    a(f"s_lshl_b32 s{S_T0}, s{SA_QW}, 12")
    a(f"v_lshrrev_b32 v{T}, 4, v{L}")
    a(f"v_and_b32 v{T+1}, 15, v{L}")
    a(f"v_xor_b32 v{T+1}, v{T+1}, v{T}")
    a(f"v_lshlrev_b32 v{T+1}, 4, v{T+1}")
    a(f"v_lshlrev_b32 v{T}, 8, v{T}")
    a(f"v_add3_u32 v{AV_DK}, v{T}, v{T+1}, s{S_T0}")
    a(f"v_lshrrev_b32 v{T}, 3, v{L}")
    a(f"v_lshrrev_b32 v{T+2}, 4, v{L}")
    a(f"v_and_b32 v{T+1}, 7, v{L}")
    a(f"v_xor_b32 v{T+1}, v{T+1}, v{T+2}")
    a(f"v_lshlrev_b32 v{T+1}, 4, v{T+1}")
    a(f"v_lshlrev_b32 v{T}, 7, v{T}")
    a(f"v_add3_u32 v{AV_DV}, v{T}, v{T+1}, s{S_T0}")
    a(f"s_mul_i32 s{SA_M0}, s{SA_KH}, {GRP}")
    a(f"s_mul_i32 s{S_T0}, s{SA_QW}, 4352")
    a(f"s_add_u32 s{SA_M0}, s{SA_M0}, s{S_T0}")
    a(f"s_add_u32 s{S_T0}, s{SA_M0}, {SLOT}")
    a(f"s_xor_b32 s{SA_XK}, s{S_T0}, s{SA_M0}")
    a(f"s_add_u32 s{SA_WV}, s{SA_M0}, {2*SLOT}")
    a(f"s_add_u32 s{S_T1}, s{SA_M0}, {3*SLOT}")
    a(f"s_xor_b32 s{SA_XV}, s{SA_WV}, s{S_T1}")
    a(f"s_mov_b32 s{SA_WK}, s{SA_M0}")
    for t in range(2):
        lsk = a.uid("Lnk")
        a(f"s_cmp_lg_u32 s{SA_KH}, 0")
        a(f"s_cbranch_scc1 {lsk}")
        for q in range(4):
            for x in dma_k(q): a(x)
        a(f"s_mov_b32 s{S_T0}, {t*16384}")
        for q in range(4):
            a(f"s_add_u32 m0, s{SA_WK}, {GRP + 64*q}")
            a("s_nop 0")
            a(f"buffer_load_dwordx4 v{AV_DK}, s[{SRD_K}:{SRD_K+3}], s{S_T0} offen offset:{q*1024} lds")
        a.label(lsk)
        for x in adv_k(): a(x)
    if vdma:
        for q in range(4):
            for x in dma_v(q): a(x)
        for x in adv_v(): a(x)

def attn_late(a, hflag):
    T = AV_T; L = AV_L
    a(f"s_lshl_b32 s{S_T1}, s{SA_QB}, 1")
    a(f"s_cmp_eq_u32 s{SA_KH}, 0")
    a(f"s_cselect_b32 s{SA_D0}, 15, s{S_T1}")
    a(f"s_cselect_b32 s{SA_SW}, 99, s{SA_SWB}")
    a(f"s_cselect_b32 s{S_T3}, s{SA_QA}, s{SA_QB}")
    a(f"s_mov_b32 s{SA_I}, 0")
    a("s_barrier")
    a(f"v_lshlrev_b32 v{T}, 4, v{L}")
    a(f"s_lshl_b32 s{S_T0}, s{SA_QW}, 13")
    a(f"s_add_u32 s{S_T0}, s{S_T0}, {2*SLOT}")
    a(f"v_add_u32 v{T+1}, s{S_T0}, v{T}")
    a(f"s_mul_i32 s{S_T1}, s{SA_KH}, {GRP}")
    a(f"v_add_u32 v{T}, s{S_T1}, v{T+1}")
    for ds in range(8):
        a(f"ds_read_b128 {vr(AV_Q+4*ds,4)}, v{T} offset:{ds*1024}")
    for ds in range(8):
        a(f"ds_read_b128 {vr(AV_QN+4*ds,4)}, v{T+1} offset:{ds*1024}")
    a("s_waitcnt lgkmcnt(0)")
    a("s_barrier")
    for q in range(4):
        for x in dma_v(q): a(x)
    for x in adv_v(): a(x)
    make_srd(a, SRD_O, S_WS, WS_ACT2, WS_ACT2 + 2048 * LD_ACT2)
    a(f"v_and_b32 v{T}, 31, v{L}")
    a(f"v_lshrrev_b32 v{T+1}, 2, v{T}")
    a(f"v_mul_u32_u24 v{T+1}, 1088, v{T+1}")
    a(f"v_and_b32 v{T}, 3, v{T}")
    a(f"v_lshlrev_b32 v{T+2}, 8, v{T}")
    a(f"v_add_u32 v{T+1}, v{T+1}, v{T+2}")
    a(f"v_lshrrev_b32 v{T+2}, 5, v{L}")
    a(f"v_xor_b32 v{T+2}, v{T+2}, v{T}")
    a(f"v_lshlrev_b32 v{T+2}, 4, v{T+2}")
    a(f"s_mul_i32 s{S_T0}, s{SA_KH}, {GRP}")
    a(f"v_add3_u32 v{AV_KA}, v{T+1}, v{T+2}, s{S_T0}")
    a(f"v_xor_b32 v{T+2}, 32, v{T+2}")
    a(f"v_add3_u32 v{AV_KA+1}, v{T+1}, v{T+2}, s{S_T0}")
    a(f"v_and_b32 v{T}, 31, v{L}")
    a(f"v_lshrrev_b32 v{T+1}, 3, v{T}")
    a(f"v_mul_u32_u24 v{T+1}, 1088, v{T+1}")
    a(f"v_and_b32 v{T}, 7, v{T}")
    a(f"v_lshlrev_b32 v{T+2}, 7, v{T}")
    a(f"v_add_u32 v{T+1}, v{T+1}, v{T+2}")
    a(f"v_lshrrev_b32 v{T}, 1, v{T}")
    a(f"v_lshrrev_b32 v{T+2}, 5, v{L}")
    a(f"v_xor_b32 v{T+2}, v{T+2}, v{T}")
    a(f"v_lshlrev_b32 v{T+2}, 4, v{T+2}")
    a(f"v_add_u32 v{T+3}, v{T+1}, v{T+2}")
    a(f"v_xor_b32 v{T+2}, 32, v{T+2}")
    a(f"v_add_u32 v{T+1}, v{T+1}, v{T+2}")
    a(f"s_mul_i32 s{S_T0}, s{SA_KH}, {GRP + 8704}")
    a(f"s_add_u32 s{S_T0}, s{S_T0}, {2*SLOT}")
    a(f"s_mul_i32 s{S_T1}, s{SA_KH}, {GRP - 8704}")
    a(f"s_add_u32 s{S_T1}, s{S_T1}, {2*SLOT + 8704}")
    a(f"v_add_u32 v{AV_VA}, s{S_T0}, v{T+3}")
    a(f"v_add_u32 v{AV_VA+1}, s{S_T0}, v{T+1}")
    a(f"v_add_u32 v{AV_VA+2}, s{S_T1}, v{T+3}")
    a(f"v_add_u32 v{AV_VA+3}, s{S_T1}, v{T+1}")
    a(f"v_and_b32 v{T}, 31, v{L}")
    a(f"v_lshrrev_b32 v{T+1}, 5, v{L}")
    a(f"v_lshlrev_b32 v{T+2}, 2, v{T+1}")
    a(f"v_sub_u32 v{T+2}, v{T}, v{T+2}")
    a(f"s_lshl_b32 s{S_T0}, s{SA_QW}, 5")
    a(f"v_add_u32 v{AV_THR}, s{S_T0}, v{T+2}")
    a(f"s_mov_b32 s{S_T1}, {LD_ACT2}")
    a(f"v_lshrrev_b32 v{T}, 3, v{L}")
    a(f"v_mul_lo_u32 v{T}, v{T}, s{S_T1}")
    a(f"v_and_b32 v{T+1}, 7, v{L}")
    a(f"v_lshlrev_b32 v{T+1}, 4, v{T+1}")
    a(f"v_add_u32 v{AV_OV}, v{T}, v{T+1}")
    a(f"s_mul_i32 s{SA_OB}, s{S_T0}, {LD_ACT2}")
    a(f"s_lshl_b32 s{S_T1}, s{SA_H}, 8")
    a(f"s_add_u32 s{SA_OB}, s{SA_OB}, s{S_T1}")
    a(f"s_mov_b32 s{SA_DK}, {SLOT}")
    a(f"s_mov_b32 s{SA_DV}, {SLOT}")
    a(f"v_mov_b32 v{AV_M}, 0")
    a(f"v_mov_b32 v{AV_LS}, 0")
    a(f"v_mov_b32 v{AV_L2}, 0")
    for e in range(0, 16, 2):
        a(f"v_mov_b64 {vr(AV_NM+e,2)}, 0")
    for i in range(0, 64, 2):
        a(f"v_mov_b64 {vr(AV_O+i,2)}, 0")
    a(f"s_mov_b32 s{SA_FLAG}, 0")
    a(f"s_mov_b32 s{SA_NMZ}, 0")
    a(f"v_lshlrev_b32 v{AV_PFV}, 4, v{L}")
    a(f"s_lshl_b32 s{SA_PF}, s2, 3")
    a(f"s_add_u32 s{SA_PF}, s{SA_PF}, s{S_W}")
    a(f"s_lshl_b32 s{SA_PF}, s{SA_PF}, 10")
    stamp(a, 2)
    KR = list(range(AV_KA, AV_KA + 2)); VR = list(range(AV_VA, AV_VA + 4))
    for j in range(8): a(rdk(j, j))
    for j in range(8):
        a(f"s_waitcnt lgkmcnt({7-j})")
        a(mf("k", j, j))
    a("s_nop 7")
    a("s_nop 3")
    stage(a, 0, True, False, True, False, first=True)
    toggle(a, KR, SA_DK)
    a("s_waitcnt vmcnt(0)")
    a("s_barrier")
    hflag(a)
    a.label("attn_loop")
    stage(a, 1, True, True, True, True)
    a(f"s_add_u32 s{SA_I}, s{SA_I}, 1")
    stage(a, 0, True, True, True, True)
    toggle(a, KR, SA_DK)
    toggle(a, VR, SA_DV)
    a("s_waitcnt vmcnt(%d)" % (0 if "nowpf" in ATT_EXP else 1))
    a("s_barrier")
    a(f"s_sub_u32 s{S_T0}, s{SA_I}, s{SA_SWB}")
    a(f"s_lshl_b32 s{S_T1}, s{S_W}, 8")
    a(f"s_add_u32 s{S_T0}, s{S_T0}, s{S_T1}")
    a(f"s_cmp_lg_u32 s{S_T0}, 1")
    a("s_cbranch_scc1 attn_nofb")
    ctx_flag(a, SA_QB)
    a.label("attn_nofb")
    a(f"s_cmp_lt_u32 s{SA_I}, 16")
    a("s_cbranch_scc1 attn_loop")
    stage(a, 1, False, True, True, False)
    stage(a, 0, False, True, False, False)
    a("s_barrier")
    a(f"v_add_f32 v{AV_LS}, v{AV_LS}, v{AV_L2}")
    a(f"v_mov_b32 v{T+2}, v{AV_LS}")
    a("s_nop 1")
    a(f"v_permlane32_swap_b32 v{AV_LS}, v{T+2}")
    a("s_nop 0")
    a(f"v_add_f32 v{AV_LS}, v{AV_LS}, v{T+2}")
    a(f"s_mul_i32 s{S_T0}, s{SA_QW}, 8704")
    a(f"s_mul_i32 s{S_T1}, s{SA_KH}, {GRP}")
    a(f"s_add_u32 s{S_T2}, s{S_T0}, s{S_T1}")
    a(f"s_sub_u32 s{S_T3}, {GRP}, s{S_T1}")
    a(f"s_add_u32 s{S_T3}, s{S_T3}, s{S_T0}")
    a(f"v_lshlrev_b32 v{T}, 4, v{L}")
    a(f"v_add_u32 v{T+1}, s{S_T3}, v{T}")
    a(f"v_add_u32 v{T}, s{S_T2}, v{T}")
    a(f"v_lshlrev_b32 v{T+3}, 3, v{L}")
    a(f"v_add_u32 v{T+2}, s{S_T2}, v{T+3}")
    a(f"v_add_u32 v{T+3}, s{S_T3}, v{T+3}")
    a("s_nop 7")
    for i in range(8):
        a(f"ds_write_b128 v{T}, {vr(AV_O+32+4*i,4)} offset:{i*1024}")
    a(f"ds_write_b64 v{T+2}, {vr(AV_M,2)} offset:8192")
    a("s_waitcnt lgkmcnt(0)")
    a("s_barrier")
    R = AV_QN; X = AV_X
    for i in range(8):
        a(f"ds_read_b128 {vr(R+4*i,4)}, v{T+1} offset:{i*1024}")
    a(f"ds_read_b64 {vr(X,2)}, v{T+3} offset:8192")
    a("s_waitcnt lgkmcnt(0)")
    a(f"v_max_f32 v{X+2}, v{AV_M}, v{X}")
    a(f"v_sub_f32 v{X+3}, v{AV_M}, v{X+2}")
    a(f"v_sub_f32 v{X+4}, v{X}, v{X+2}")
    a(f"v_exp_f32 v{X+3}, v{X+3}")
    a(f"v_exp_f32 v{X+4}, v{X+4}")
    a("s_nop 0")
    a(f"v_mul_f32 v{X+5}, v{AV_LS}, v{X+3}")
    a(f"v_fmac_f32 v{X+5}, v{X+1}, v{X+4}")
    a(f"v_rcp_f32 v{X+5}, v{X+5}")
    a("s_nop 0")
    a(f"v_mul_f32 v{T}, v{X+3}, v{X+5}")
    a(f"v_mul_f32 v{T+1}, v{X+4}, v{X+5}")
    for e in range(32):
        a(f"v_mul_f32 v{AV_O+e}, v{AV_O+e}, v{T}")
        a(f"v_fmac_f32 v{AV_O+e}, v{R+e}, v{T+1}")
    finalize_store(a, None, 2, SA_QA, True)
```

```python
import sys, math
sys.path.insert(0, "dev")
from asmlib import *

NAME = "parallel_sum__compressed_kv_cla__dense_activation_gelu__prompt"
MB = 1 << 20
WS_XN, WS_Q, WS_K, WS_V, WS_ACT2, WS_PART = 0, 4 * MB, 20 * MB, 36 * MB, 52 * MB, 84 * MB
WS_SIZE = 256 * MB
import os
LD_ACT2 = 7680 * 2 + int(os.environ.get('PAD_ACT2', '128'))
LD_XN = 2048 + int(os.environ.get('PAD_XN', '128'))
WS_XN = 210 * MB
XN_BYTES = 2048 * LD_XN

S_X, S_CKV, S_WQ, S_WUK, S_WUV, S_WO, S_BX, S_W1 = 16, 18, 20, 22, 24, 26, 28, 30
S_B1, S_W2, S_B2, S_OUT, S_DBG, S_WS = 32, 34, 36, 38, 40, 42
SRD_A, SRD_W, SRD_O, SRD_X = 44, 48, 52, 56
S_W, S_WM, S_WN, S_LDSW = 60, 61, 62, 63
S_OFFA, S_OFFW, S_WSTEP, S_CNT = 64, 65, 66, 67
S_T0, S_T1, S_T2, S_T3 = 68, 69, 70, 71
S_MT, S_NT, S_LDW = 72, 73, 74
S_T4, S_T5, S_T6, S_T7 = 76, 77, 78, 79

def load_args(a):
    a("s_load_dwordx16 s[16:31], s[0:1], 0")
    a("s_load_dwordx8 s[32:39], s[0:1], 64")
    a("s_load_dwordx4 s[40:43], s[0:1], 96")

def make_srd(a, srd, base, off_sreg_or_imm, total):
    if isinstance(off_sreg_or_imm, int):
        off = off_sreg_or_imm
        a(f"s_add_u32 s{srd}, s{base}, {off}")
        a(f"s_addc_u32 s{srd+1}, s{base+1}, 0")
        a(f"s_mov_b32 s{srd+2}, {total - off}")
    else:
        off = off_sreg_or_imm
        a(f"s_add_u32 s{srd}, s{base}, {off}")
        a(f"s_addc_u32 s{srd+1}, s{base+1}, 0")
        a(f"s_sub_u32 s{srd+2}, {total}, {off}")
    a(f"s_and_b32 s{srd+1}, s{srd+1}, 0xffff")
    a(f"s_mov_b32 s{srd+3}, 0x00020000")

def kstart(a, name):
    a.raw(".text")
    a.raw(f".globl {name}")
    a.raw(".p2align 8")
    a.raw(f".type {name},@function")
    a.label(name)


import os
STAMP = os.environ.get("STAMP", "0") == "1"
WS_STAMP = 240 * MB
S_ST = 88
FROZEN = [False]
def stamp(a, idx):
    if not STAMP: return
    if FROZEN[0]: return
    if os.environ.get('PD', '') == '1' and idx == 5: FROZEN[0] = True
    if idx == 0:
        a("s_memrealtime s[86:87]")
        a("s_waitcnt lgkmcnt(0)")
        a("s_mov_b32 s95, s86")
        a("s_mov_b32 s94, s86")
    a("s_memtime s[86:87]")
    a("s_waitcnt lgkmcnt(0)")
    a(f"s_mov_b32 s{S_ST+idx}, s86")
def stamp_flush(a, kidx, n):
    if not STAMP: return
    a("s_waitcnt vmcnt(0)")
    stamp(a, n)
    a("s_memrealtime s[86:87]")
    a("s_waitcnt lgkmcnt(0)")
    a("s_sub_u32 s95, s86, s95")
    n = 7
    make_srd(a, 80, S_WS, WS_STAMP + kidx * 65536, WS_STAMP + (kidx + 1) * 65536)
    a("s_lshl_b32 s84, s2, 3")
    a(f"s_add_u32 s84, s84, s{S_W}")
    a("s_lshl_b32 s84, s84, 5")
    a("v_mov_b32 v0, 0")
    for i in range(n + 1):
        a(f"v_mov_b32 v2, s{S_ST+i}")
        a(f"buffer_store_dword v2, v0, s[80:83], s84 offen offset:{4*i}")

WS_FLAG = 200 * MB
F_LN, F_KV, F_QH, F_CTX, F_PART = 0, 32768, 65536, 98304, 163840
FLAG_BYTES = 262144
S_TOK = 12
S_SPIN = 14
def flag_srd(a, srd):
    make_srd(a, srd, S_WS, WS_FLAG, WS_FLAG + FLAG_BYTES)
def flag_store(a, srd, soff, vt):
    a(f"v_mov_b32 v{vt}, s{S_TOK}")
    a(f"v_mov_b32 v{vt+1}, s{S_TOK+1}")
    a(f"v_mov_b32 v{vt+2}, 0")
    a("s_mov_b64 exec, 1")
    a(f"buffer_store_dwordx2 {vr(vt,2)}, v{vt+2}, s[{srd}:{srd+3}], s{soff} offen sc0 sc1")
    a("s_mov_b64 exec, -1")
def flag_load(a, srd, voff, vp):
    a(f"buffer_load_dwordx2 {vr(vp,2)}, v{voff}, s[{srd}:{srd+3}], 0 offen sc0 sc1")
def flag_check(a, srd, voff, vp, preloaded=False):
    lp, ok, ld = a.uid("Lpoll"), a.uid("Lok"), a.uid("Lld")
    a(f"s_mov_b32 s{S_SPIN}, 0x400000")
    if preloaded:
        a(f"s_branch {lp}")
    a.label(ld)
    flag_load(a, srd, voff, vp)
    a("s_waitcnt vmcnt(0)")
    a.label(lp)
    a(f"v_cmp_ne_u32 vcc, s{S_TOK}, v{vp}")
    a(f"v_cmp_ne_u32 s[{S_T0}:{S_T0+1}], s{S_TOK+1}, v{vp+1}")
    a("s_nop 3")
    a(f"s_or_b64 vcc, vcc, s[{S_T0}:{S_T0+1}]")
    a(f"s_cbranch_scc0 {ok}")
    a("s_sleep 1")
    a(f"s_sub_u32 s{S_SPIN}, s{S_SPIN}, 1")
    a(f"s_cmp_lg_u32 s{S_SPIN}, 0")
    a(f"s_cbranch_scc1 {ld}")
    a("s_mov_b64 vcc, 0")
    a.label(ok)
def w0_begin(a):
    l = a.uid("Lnw0")
    a(f"s_cmp_lg_u32 s{S_W}, 0")
    a(f"s_cbranch_scc1 {l}")
    return l
```

```python
import sys, math, os
from asmlib import *
from gen_common import *

EXP = os.environ.get("EXP", "")
V_L = 1
V_ARD = 2
V_WRD = 4
V_ADMA = 8
V_WDMA = 12
V_AF = 16
V_WF = 48
V_TMP = 80
V_ACC = 128

def acc(mb, nb):
    return V_ACC + (mb * 4 + nb) * 4

def wave_ids(a):
    a(f"v_and_b32 v{V_L}, 63, v0")
    a("v_lshrrev_b32 v2, 6, v0")
    a("s_nop 0")
    a(f"v_readfirstlane_b32 s{S_W}, v2")
    a("s_nop 3")
    a(f"s_lshr_b32 s{S_WM}, s{S_W}, 2")
    a(f"s_and_b32 s{S_WN}, s{S_W}, 3")
    a(f"s_lshl_b32 s{S_LDSW}, s{S_W}, 12")

def gemm_addrs(a, lda, ldw, dma_only=False):
    T = V_TMP
    L = V_L
    a(f"v_lshrrev_b32 v{T}, 3, v{L}")
    a(f"v_lshrrev_b32 v{T+1}, 4, v{L}")
    a(f"v_and_b32 v{T+2}, 7, v{L}")
    a(f"v_xor_b32 v{T+2}, v{T+2}, v{T+1}")
    a(f"v_lshlrev_b32 v{T+2}, 4, v{T+2}")
    a(f"v_xor_b32 v{T+3}, 64, v{T+2}")
    a(f"s_lshl_b32 s{S_T0}, s{S_W}, 5")
    a(f"v_add_u32 v{T}, s{S_T0}, v{T}")
    if isinstance(lda, int):
        a(f"s_mov_b32 s{S_T1}, {lda}")
        ldas = f"s{S_T1}"
    else:
        ldas = lda
    a(f"v_mul_lo_u32 v{T}, v{T}, {ldas}")
    a(f"s_lshl_b32 s{S_T2}, {ldas}, 3")
    for q in range(4):
        a(f"v_add_u32 v{V_ADMA+q}, v{T}, v{T+2+(q&1)}")
        if q < 3:
            a(f"v_add_u32 v{T}, s{S_T2}, v{T}")
    a(f"v_lshrrev_b32 v{T}, 5, v{L}")
    a(f"v_and_b32 v{T+2}, 31, v{L}")
    a(f"v_lshlrev_b32 v{T+3}, 1, v{T}")
    a(f"v_xor_b32 v{T+2}, v{T+2}, v{T+3}")
    a(f"s_and_b32 s{S_T0}, s{S_W}, 1")
    a(f"s_lshl_b32 s{S_T0}, s{S_T0}, 3")
    a(f"v_xor_b32 v{T+2}, s{S_T0}, v{T+2}")
    a(f"v_lshlrev_b32 v{T+2}, 4, v{T+2}")
    a(f"v_xor_b32 v{T+3}, 64, v{T+2}")
    a(f"s_lshl_b32 s{S_T0}, s{S_W}, 3")
    a(f"v_add_u32 v{T}, s{S_T0}, v{T}")
    if isinstance(ldw, int):
        a(f"s_mov_b32 s{S_T1}, {ldw}")
        ldws = f"s{S_T1}"
    else:
        ldws = ldw
    a(f"v_mul_lo_u32 v{T}, v{T}, {ldws}")
    a(f"s_lshl_b32 s{S_T2}, {ldws}, 1")
    a(f"s_lshl_b32 s{S_WSTEP}, {ldws}, 6")
    for q in range(4):
        a(f"v_add_u32 v{V_WDMA+q}, v{T}, v{T+2+(q&1)}")
        if q < 3:
            a(f"v_add_u32 v{T}, s{S_T2}, v{T}")
    if dma_only: return
    a(f"v_and_b32 v{T}, 15, v{L}")
    a(f"v_lshrrev_b32 v{T+2}, 1, v{T}")
    a(f"v_xor_b32 v{T+2}, v{T+2}, v{T+1}")
    a(f"v_lshlrev_b32 v{T+2}, 4, v{T+2}")
    a(f"s_lshl_b32 s{S_T0}, s{S_WM}, 7")
    a(f"v_add_u32 v{T+3}, s{S_T0}, v{T}")
    a(f"v_lshlrev_b32 v{T+3}, 7, v{T+3}")
    a(f"v_add_u32 v{V_ARD}, v{T+3}, v{T+2}")
    a(f"v_xor_b32 v{V_ARD+1}, 64, v{V_ARD}")
    a(f"v_lshrrev_b32 v{T+2}, 2, v{T}")
    a(f"v_lshlrev_b32 v{T+3}, 3, v{T+1}")
    a(f"v_add_u32 v{T+3}, v{T+3}, v{T+2}")
    a(f"v_lshlrev_b32 v{T+3}, 9, v{T+3}")
    a(f"v_add_u32 v{T+3}, 0x10000, v{T+3}")
    a(f"v_and_b32 v{T+4}, 3, v{L}")
    a(f"v_lshlrev_b32 v{T+4}, 3, v{T+4}")
    a(f"v_add_u32 v{T+3}, v{T+3}, v{T+4}")
    a(f"v_and_b32 v{T+4}, 1, v{T+1}")
    a(f"v_xor_b32 v{T+4}, s{S_WN}, v{T+4}")
    a(f"v_lshlrev_b32 v{T+4}, 7, v{T+4}")
    a(f"v_add_u32 v{T+3}, v{T+3}, v{T+4}")
    for nb in range(4):
        a(f"v_xor_b32 v{T+4}, {nb}, v{T+2}")
        a(f"v_lshlrev_b32 v{T+4}, 5, v{T+4}")
        a(f"v_add_u32 v{V_WRD+nb}, v{T+3}, v{T+4}")

def dma_a(a, stage, q):
    a(f"s_add_u32 m0, s{S_LDSW}, {stage*32768 + q*1024}")
    a("s_nop 0")
    a(f"buffer_load_dwordx4 v{V_ADMA+q}, s[{SRD_A}:{SRD_A+3}], s{S_OFFA} offen lds")

def dma_w(a, stage, q):
    a(f"s_add_u32 m0, s{S_LDSW}, {65536 + stage*32768 + q*1024}")
    a("s_nop 0")
    a(f"buffer_load_dwordx4 v{V_WDMA+q}, s[{SRD_W}:{SRD_W+3}], s{S_OFFW} offen lds")

ADV_HOOK = [None]
EPI_FLAGS = ['']
SPLIT = [False]
S_OFFA2, S_OFFW2, S_DA, S_DW = 4, 5, 6, 7
def dma_a2(a, stage, q):
    a(f"s_add_u32 m0, s{S_LDSW}, {stage*32768 + q*1024 + 16384}")
    a("s_nop 0")
    a(f"buffer_load_dwordx4 v{V_ADMA+q}, s[{SRD_A}:{SRD_A+3}], s{S_OFFA2} offen lds")
def dma_w2(a, stage, q):
    a(f"s_add_u32 m0, s{S_LDSW}, {65536 + stage*32768 + q*1024 + 16384}")
    a("s_nop 0")
    a(f"buffer_load_dwordx4 v{V_WDMA+q}, s[{SRD_W}:{SRD_W+3}], s{S_OFFW2} offen lds")
def dma_advance(a):
    a(f"s_add_u32 s{S_OFFA}, s{S_OFFA}, 128")
    a(f"s_add_u32 s{S_OFFW}, s{S_OFFW}, s{S_WSTEP}")
    if SPLIT[0]:
        a(f"s_add_u32 s{S_OFFA2}, s{S_OFFA}, s{S_DA}")
        a(f"s_add_u32 s{S_OFFW2}, s{S_OFFW}, s{S_DW}")
    if ADV_HOOK[0]:
        ADV_HOOK[0](a)

def rd_a(a, stage, ks, mb):
    if "noread" in EXP: return
    a(f"ds_read_b128 {vr(V_AF+4*mb,4)}, v{V_ARD+ks} offset:{stage*32768 + mb*2048}")

def rd_w(a, stage, ks, wset, nb):
    if "noread" in EXP: return
    for h in range(2):
        a(f"ds_read_b64_tr_b16 {vr(V_WF+16*wset+4*nb+2*h,2)}, v{V_WRD+nb} offset:{stage*32768 + ks*16384 + h*2048}")

def mfma4(a, mb, wset, swap, czero=False):
    if "nomfma" in EXP: return
    for nb in range(4):
        d = vr(acc(mb, nb), 4)
        w = vr(V_WF + 16 * wset + 4 * nb, 4)
        x = vr(V_AF + 4 * mb, 4)
        c = "0" if czero else d
        if swap:
            a(f"v_mfma_f32_16x16x32_bf16 {d}, {x}, {w}, {c}")
        else:
            a(f"v_mfma_f32_16x16x32_bf16 {d}, {w}, {x}, {c}")

def kstep(a, p, swap, dma=True, last=False, vm=0, start=None, after_bar=None, tail=None, before_bar=None, czero=False, allwait=False):
    if start: start(a)
    a("s_waitcnt lgkmcnt(4)")
    for mb in range(8):
        if mb == 4:
            a("s_waitcnt lgkmcnt(12)")
        mfma4(a, mb, 0, swap, czero)
        rd_a(a, p, 1, mb)
        if mb < 4:
            rd_w(a, p, 1, 1, mb)
    a("s_waitcnt lgkmcnt(4)")
    mfma4(a, 0, 1, swap)
    mfma4(a, 1, 1, swap)
    if last:
        a("s_waitcnt lgkmcnt(0)")
        for mb in range(2, 8):
            mfma4(a, mb, 1, swap)
        return
    if vm == "w0":
        l1 = a.uid("Lw0")
        a("s_waitcnt lgkmcnt(0)")
        if SPLIT[0]: a(f"s_cbranch_vccnz {l1}")
        a("s_waitcnt vmcnt(1)")
        a(f"s_cmp_eq_u32 s{S_W}, 0")
        a(f"s_cbranch_scc1 {l1}")
        a("s_waitcnt vmcnt(0)")
        a.label(l1)
    elif isinstance(vm, tuple):
        l1 = a.uid("Lfw"); l2 = a.uid("Lfw")
        a("s_waitcnt lgkmcnt(0)")
        a(f"s_cbranch_vccnz {l1}")
        a("s_waitcnt vmcnt(%d)" % vm[0])
        a(f"s_branch {l2}")
        a.label(l1)
        a("s_waitcnt vmcnt(%d)" % vm[1])
        a.label(l2)
    elif SPLIT[0] and not allwait:
        l1 = a.uid("Lfw")
        a("s_waitcnt lgkmcnt(0)")
        a(f"s_cbranch_vccnz {l1}")
        a("s_waitcnt vmcnt(%d)" % vm)
        a.label(l1)
    else:
        a("s_waitcnt vmcnt(%d) lgkmcnt(0)" % vm)
    if before_bar: before_bar(a)
    a("s_barrier")
    if after_bar: after_bar(a)
    q = p ^ 1
    rd_a(a, q, 0, 0)
    rd_a(a, q, 0, 1)
    rd_w(a, q, 0, 0, 0)
    rd_w(a, q, 0, 0, 1)
    dl = []
    if dma:
        dl = [(dma_a, i) for i in range(4)] + [(dma_w, i) for i in range(4)]
        if SPLIT[0]:
            dl = [(dma_a, i) for i in range(4)] + [(dma_a2, i) for i in range(4)] + [(dma_w, i) for i in range(4)] + [(dma_w2, i) for i in range(4)]
    for mb in range(2, 8):
        mfma4(a, mb, 1, swap)
        rd_a(a, q, 0, mb)
        if mb < 4:
            rd_w(a, q, 0, 0, mb)
        n = 1 if mb < 4 else (2 if mb < 6 else 1)
        if SPLIT[0]: n = 2 if mb < 4 else 3
        lsk = None
        if dl and SPLIT[0]:
            lsk = a.uid("Lnd")
            a(f"s_cbranch_vccnz {lsk}")
        for _ in range(n):
            if dl:
                f, i = dl.pop(0)
                f(a, p, i)
        if lsk: a.label(lsk)
    assert not dl
    if dma:
        dma_advance(a)
    if tail: tail(a)

def gemm_prologue_dma(a, init=True):
    if init:
        a(f"s_mov_b32 s{S_OFFA}, 0")
        a(f"s_mov_b32 s{S_OFFW}, 0")
    for st in range(2):
        for q in range(4):
            dma_a(a, st, q)
        for q in range(4):
            dma_w(a, st, q)
        dma_advance(a)

def zero_acc(a):
    for i in range(0, 128, 2):
        a(f"v_mov_b64 {vr(V_ACC+i,2)}, 0")

def gemm_main(a, nk, swap, first_wait_vm):
    assert nk >= 5 or nk == 4
    stamp(a, 1)
    a(f"s_waitcnt vmcnt({first_wait_vm})")
    a("s_barrier")
    stamp(a, 2)
    rd_a(a, 0, 0, 0); rd_a(a, 0, 0, 1); rd_w(a, 0, 0, 0, 0); rd_w(a, 0, 0, 0, 1)
    rd_a(a, 0, 0, 2); rd_w(a, 0, 0, 0, 2); rd_a(a, 0, 0, 3); rd_w(a, 0, 0, 0, 3)
    for mb in range(4, 8):
        rd_a(a, 0, 0, mb)
    a(f"s_mov_b32 s{S_CNT}, {(nk-2)//2}")
    lp = a.uid("Lk")
    a.label(lp)
    kstep(a, 0, swap)
    kstep(a, 1, swap)
    a(f"s_sub_u32 s{S_CNT}, s{S_CNT}, 1")
    a(f"s_cmp_lg_u32 s{S_CNT}, 0")
    a(f"s_cbranch_scc1 {lp}")
    if nk % 2 == 0:
        kstep(a, 0, swap, dma=False)
        kstep(a, 1, swap, dma=False, last=True)
    else:
        kstep(a, 0, swap, dma=True)
        kstep(a, 1, swap, dma=False)
        kstep(a, 0, swap, dma=False, last=True)
    a("s_nop 7")
    a("s_nop 1")
    stamp(a, 3)

def epi_voff_P(a, vdst, ld):
    T = V_TMP
    a(f"v_and_b32 v{T}, 15, v{V_L}")
    if isinstance(ld, int) and (ld & (ld - 1)) == 0:
        a(f"v_lshlrev_b32 v{T}, {ld.bit_length()-1}, v{T}")
    else:
        a(f"s_mov_b32 s{S_T0}, {ld}")
        a(f"v_mul_lo_u32 v{T}, v{T}, s{S_T0}")
    a(f"v_lshrrev_b32 v{T+1}, 4, v{V_L}")
    a(f"v_and_b32 v{T+2}, 1, v{T+1}")
    a(f"v_lshlrev_b32 v{T+2}, 5, v{T+2}")
    a(f"v_lshrrev_b32 v{T+1}, 1, v{T+1}")
    a(f"v_lshlrev_b32 v{T+1}, 4, v{T+1}")
    a(f"v_add3_u32 v{vdst}, v{T}, v{T+1}, v{T+2}")

def epi_P(a, voff, soff, ld, post=None, qfrag=False):
    TQ = V_TMP + 16
    k = 0
    for mb in range(8):
        for p in range(2):
            t = TQ + 4 * (k % 8); k += 1
            b0, b1 = acc(mb, 2 * p), acc(mb, 2 * p + 1)
            if post:
                post(a, mb, 2 * p); post(a, mb, 2 * p + 1)
            a(f"v_cvt_pk_bf16_f32 v{t}, v{b0}, v{b0+1}")
            a(f"v_cvt_pk_bf16_f32 v{t+1}, v{b0+2}, v{b0+3}")
            a(f"v_cvt_pk_bf16_f32 v{t+2}, v{b1}, v{b1+1}")
            a(f"v_cvt_pk_bf16_f32 v{t+3}, v{b1+2}, v{b1+3}")
            a("s_nop 1")
            a(f"v_permlane16_swap_b32 v{t}, v{t+2}")
            a(f"v_permlane16_swap_b32 v{t+1}, v{t+3}")
            a("s_nop 0")
            off = (mb & 1) * 256 + p * 2048 if qfrag else p * 64
            a(f"buffer_store_dwordx4 {vr(t,4)}, v{voff}, s[{SRD_O}:{SRD_O+3}], s{soff} offen offset:{off} {EPI_FLAGS[0]}")
        if mb < 7:
            if qfrag:
                if mb & 1: a(f"s_add_u32 s{soff}, s{soff}, 8192")
            else:
                a(f"s_add_u32 s{soff}, s{soff}, {16*ld}")

def epi_V(a, voff, soff):
    TQ = V_TMP + 16
    a(f"s_add_u32 s{S_T6}, s{soff}, 16384")
    k = 0
    for nb in range(4):
        for mp in range(4):
            t = TQ + 4 * (k % 8); k += 1
            b0, b1 = acc(2 * mp, nb), acc(2 * mp + 1, nb)
            a(f"v_cvt_pk_bf16_f32 v{t}, v{b0}, v{b0+1}")
            a(f"v_cvt_pk_bf16_f32 v{t+1}, v{b0+2}, v{b0+3}")
            a(f"v_cvt_pk_bf16_f32 v{t+2}, v{b1}, v{b1+1}")
            a(f"v_cvt_pk_bf16_f32 v{t+3}, v{b1+2}, v{b1+3}")
            a("s_nop 1")
            a(f"v_permlane32_swap_b32 v{t}, v{t+2}")
            a(f"v_permlane32_swap_b32 v{t+1}, v{t+3}")
            a("s_nop 0")
            a(f"buffer_store_dwordx4 {vr(t,4)}, v{voff}, s[{SRD_O}:{SRD_O+3}], s{soff if mp < 2 else S_T6} offen offset:{(mp&1)*64}")
        if nb < 3:
            a(f"s_add_u32 s{soff}, s{soff}, 2048")
            a(f"s_add_u32 s{S_T6}, s{S_T6}, 2048")

def wave_sum(a, v, t):
    for ctl in ("quad_perm:[1,0,3,2]", "quad_perm:[2,3,0,1]", "row_half_mirror", "row_mirror"):
        a("s_nop 1")
        a(f"v_add_f32_dpp v{v}, v{v}, v{v} {ctl} row_mask:0xf bank_mask:0xf")
    a("s_nop 1")
    for j in range(4):
        a(f"v_readlane_b32 s{S_T4+j}, v{v}, {16*j}")
    a("s_nop 2")
    a(f"v_mov_b32 v{v}, s{S_T4}")
    for j in range(1, 4):
        a(f"v_add_f32 v{v}, s{S_T4+j}, v{v}")

def bf16_round(a, v):
    a(f"v_cvt_pk_bf16_f32 v{v}, v{v}, v{v}")
    a(f"v_lshlrev_b32 v{v}, 16, v{v}")

def layernorm_compute(a, R, X, voff, srow, srd):
    S = X + 16; M = X + 17; Q = X + 18; D = X + 19
    for j in range(8):
        a(f"v_lshlrev_b32 v{X+2*j}, 16, v{R+j}")
        a(f"v_and_b32 v{X+2*j+1}, 0xffff0000, v{R+j}")
    a(f"v_add_f32 v{S}, v{X}, v{X+1}")
    for j in range(2, 16):
        a(f"v_add_f32 v{S}, v{S}, v{X+j}")
    wave_sum(a, S, D)
    a(f"v_mul_f32 v{M}, {f32(1.0/1024)}, v{S}")
    a(f"v_mov_b32 v{Q}, 0")
    for j in range(16):
        a(f"v_sub_f32 v{D}, v{X+j}, v{M}")
        a(f"v_fmac_f32 v{Q}, v{D}, v{D}")
    wave_sum(a, Q, D)
    a(f"v_mul_f32 v{Q}, {f32(1.0/1024)}, v{Q}")
    bf16_round(a, M)
    bf16_round(a, Q)
    a(f"v_add_f32 v{Q}, {f32(1e-5)}, v{Q}")
    bf16_round(a, Q)
    a(f"v_sqrt_f32 v{Q}, v{Q}")
    a("s_nop 0")
    bf16_round(a, Q)
    a(f"v_rcp_f32 v{S}, v{Q}")
    a("s_nop 0")
    for j in range(0, 16, 2):
        a(f"v_sub_f32 v{X+j}, v{X+j}, v{M}")
        a(f"v_sub_f32 v{X+j+1}, v{X+j+1}, v{M}")
        a(f"v_cvt_pk_bf16_f32 v{D}, v{X+j}, v{X+j+1}")
        a(f"v_lshlrev_b32 v{X+j}, 16, v{D}")
        a(f"v_and_b32 v{X+j+1}, 0xffff0000, v{D}")
        for e in (j, j + 1):
            a(f"v_mul_f32 v{D}, v{X+e}, v{S}")
            a(f"v_fma_f32 v{X+e}, -v{D}, v{Q}, v{X+e}")
            a(f"v_fma_f32 v{X+e}, v{X+e}, v{S}, v{D}")
    for j in range(8):
        a(f"v_cvt_pk_bf16_f32 v{R+j}, v{X+2*j}, v{X+2*j+1}")
    a(f"buffer_store_dwordx4 {vr(R,4)}, v{voff}, s[{srd}:{srd+3}], s{srow} offen sc0 sc1")
    a(f"buffer_store_dwordx4 {vr(R+4,4)}, v{voff}, s[{srd}:{srd+3}], s{srow} offen offset:1024 sc0 sc1")

V_BIAS = V_TMP + 0
```

```python
import math, os
from asmlib import *
from gen_common import *
from gen_gemm import epi_voff_P, V_TMP, V_L

NS = int(os.environ.get("NS", "5"))
OEXP = os.environ.get("OEXP", "")
STB = 32768
B_ARD = 2
B_WRD = 4
B_ADMA = 8
B_WDMA = 10
B_F = 16
B_ACC = 128
B_X = 192
S_G, S_TYPE, S_TILE = 75, 82, 83
S_RD, S_WR = 84, 85
SRD_P = 96
XS = int(os.environ.get('XS', '0'))
S_KSW, S_ALT = 7, 8

def bacc(b, nb): return B_ACC + (b * 4 + nb) * 4
def fa(s, b): return B_F + 32 * s + 4 * b
def fw(s, nb): return B_F + 32 * s + 16 + 4 * nb

def b_dma(a, i):
    if "nodma" in OEXP: return
    q = i & 1
    if i < 2:
        a(f"s_add_u32 m0, s{S_WR}, {q*1024}")
        a("s_nop 0")
        a(f"buffer_load_dwordx4 v{B_ADMA+q}, s[{SRD_A}:{SRD_A+3}], s{S_OFFA} offen lds")
    else:
        a(f"s_add_u32 m0, s{S_WR}, {16384 + q*1024}")
        a("s_nop 0")
        a(f"buffer_load_dwordx4 v{B_WDMA+q}, s[{SRD_W}:{SRD_W+3}], s{S_OFFW} offen lds")

def b_dma_adv(a):
    a(f"s_add_u32 s{S_OFFA}, s{S_OFFA}, 128")
    a(f"s_add_u32 s{S_OFFW}, s{S_OFFW}, {64*2048}")
    a(f"s_add_u32 s{S_WR}, s{S_WR}, {STB}")
    a(f"s_cmp_ge_u32 s{S_WR}, s{S_T6}")
    a(f"s_cselect_b32 s{S_T5}, {NS*STB}, 0")
    a(f"s_sub_u32 s{S_WR}, s{S_WR}, s{S_T5}")
    if XS:
        a(f"s_sub_u32 s{S_KSW}, s{S_KSW}, 1")
        a(f"s_cmp_eq_u32 s{S_KSW}, 0")
        a(f"s_cselect_b32 s{S_OFFA}, {(4096 - 64*XS)*2}, s{S_OFFA}")
        a(f"s_cselect_b32 s{S_OFFW}, {(4096 - 64*XS)*2048}, s{S_OFFW}")
        a(f"s_cselect_b32 s{SRD_W}, s{S_ALT}, s{SRD_W}")
        a(f"s_cselect_b32 s{SRD_W+1}, s{S_ALT+1}, s{SRD_W+1}")
        a(f"s_cselect_b32 s{SRD_W+2}, s{S_ALT+2}, s{SRD_W+2}")

def b_rd_adv(a):
    a(f"s_add_u32 s{S_RD}, s{S_RD}, {STB}")
    a(f"s_cmp_ge_u32 s{S_RD}, {NS*STB}")
    a(f"s_cselect_b32 s{S_T4}, {STB - NS*STB & 0xffffffff}, s{S_T7}")
    a(f"s_cselect_b32 s{S_RD}, 0, s{S_RD}")
    for r in range(B_ARD, B_ARD + 6):
        a(f"v_add_u32 v{r}, s{S_T4}, v{r}")

def b_reads(s):
    out = []
    if "noread" in OEXP: return out
    for b in range(4):
        out.append(f"ds_read_b128 {vr(fa(s,b),4)}, v{B_ARD+(b>>1)} offset:{(b&1)*2048}")
        for h in range(2):
            out.append(f"ds_read_b64_tr_b16 {vr(fw(s,b)+2*h,2)}, v{B_WRD+b} offset:{16384 + h*1024}")
    return out

def b_step(a, s, dma, vm, rd=True, before_bar=None, after_bar=None, fx=0):
    a("s_waitcnt lgkmcnt(0)")
    mf = [(b, nb) for b in range(4) for nb in range(4)]
    def mfma(i):
        b, nb = mf[i]
        d = vr(bacc(b, nb), 4)
        if "nomfma" in OEXP: return
        a(f"v_mfma_f32_16x16x32_bf16 {d}, {vr(fw(s,nb),4)}, {vr(fa(s,b),4)}, {d}")
    for i in range(2):
        mfma(i)
    if rd:
        b_rd_adv(a)
    for i in range(2, 4):
        mfma(i)
    if rd:
        if fx:
            l = a.uid("Lfx")
            a(f"s_waitcnt vmcnt({vm + fx})")
            a(f"s_cmp_lg_u32 s{S_TYPE}, 0")
            a(f"s_cbranch_scc1 {l}")
        a(f"s_waitcnt vmcnt({vm})")
        if fx: a.label(l)
        if before_bar: before_bar(a)
        a("s_barrier")
        if after_bar: after_bar(a)
    rl = b_reads(s ^ 1) if rd else []
    dl = list(range(4)) if dma else []
    for i in range(4, 16):
        mfma(i)
        for _ in range(2):
            if rl: a(rl.pop(0))
        if not rl and dl:
            b_dma(a, dl.pop(0))
    assert not rl
    while dl:
        b_dma(a, dl.pop(0))
    if dma:
        b_dma_adv(a)

def out_base(a):
    a(f"s_lshl_b32 s{S_T1}, s{S_NT}, 8")
    a(f"s_lshl_b32 s{S_T2}, s{S_WN}, 7")
    a(f"s_add_u32 s{S_T1}, s{S_T1}, s{S_T2}")
    a(f"s_lshl_b32 s{S_T2}, s{S_MT}, 7")
    a(f"s_lshl_b32 s{S_T3}, s{S_WM}, 6")
    a(f"s_add_u32 s{S_T2}, s{S_T2}, s{S_T3}")
    a(f"s_lshl_b32 s{S_T3}, s{S_G}, 5")
    a(f"s_add_u32 s{S_T2}, s{S_T2}, s{S_T3}")
    a(f"s_lshl_b32 s{S_T2}, s{S_T2}, 11")
    a(f"s_add_u32 s{S_T3}, s{S_T2}, s{S_T1}")
    a(f"s_add_u32 s{S_T2}, s{S_T3}, {16*2048}")

def out_phase(a, pre):
    L = V_L
    T = V_TMP
    a(f"s_lshr_b32 s{S_G}, s{S_W}, 2")
    a(f"s_bfe_u32 s{S_WM}, s{S_W}, 0x10001")
    a(f"s_and_b32 s{S_WN}, s{S_W}, 1")
    a(f"s_and_b32 s{S_T0}, s2, 7")
    a(f"s_lshr_b32 s{S_TYPE}, s{S_T0}, 2")
    a(f"s_lshr_b32 s{S_T1}, s2, 3")
    a(f"s_and_b32 s{S_MT}, s{S_T1}, 7")
    a(f"s_and_b32 s{S_T2}, s{S_T0}, 1")
    a(f"s_lshl_b32 s{S_T2}, s{S_T2}, 3")
    a(f"s_add_u32 s{S_MT}, s{S_MT}, s{S_T2}")
    a(f"s_lshr_b32 s{S_NT}, s{S_T1}, 3")
    a(f"s_and_b32 s{S_T2}, s{S_T0}, 2")
    a(f"s_lshl_b32 s{S_T2}, s{S_T2}, 1")
    a(f"s_add_u32 s{S_NT}, s{S_NT}, s{S_T2}")
    a(f"s_lshl_b32 s{S_TILE}, s{S_NT}, 4")
    a(f"s_add_u32 s{S_TILE}, s{S_TILE}, s{S_MT}")
    a(f"v_and_b32 v{T+44}, 31, v{L}")
    a(f"s_lshl_b32 s{S_T0}, s{S_MT}, 5")
    a(f"v_add_u32 v{T+44}, s{S_T0}, v{T+44}")
    a(f"v_lshlrev_b32 v{T+44}, 7, v{T+44}")
    a(f"v_add_u32 v{T+44}, {F_CTX}, v{T+44}")
    a(f"v_and_b32 v{T+45}, 31, v{L}")
    a(f"v_min_u32 v{T+45}, 27, v{T+45}")
    a(f"v_lshlrev_b32 v{T+45}, 3, v{T+45}")
    a(f"s_sub_u32 s{S_T0}, 15, s{S_MT}")
    a(f"s_min_u32 s{S_T0}, s{S_T0}, s{S_MT}")
    a(f"v_add_u32 v{T+45}, s{S_T0}, v{T+45}")
    a(f"v_lshlrev_b32 v{T+45}, 7, v{T+45}")
    a(f"v_add_u32 v{T+45}, {F_QH}, v{T+45}")
    a(f"v_mov_b32 v{T+43}, v{T+44}")
    a(f"s_cmp_eq_u32 s{S_TYPE}, 0")
    a("s_cbranch_scc1 out_fo")
    a(f"v_mov_b32 v{T+44}, v{T+45}")
    a.label("out_fo")
    pre(a)
    lsk = w0_begin(a)
    flag_srd(a, SRD_X)
    flag_check(a, SRD_X, T + 44, T + 46)
    a.label(lsk)
    a("s_barrier")
    stamp(a, 4)
    a(f"s_mul_i32 s{S_T0}, s{S_MT}, {128*LD_ACT2}")
    a(f"s_add_u32 s{S_T0}, s{S_T0}, {WS_ACT2}")
    make_srd(a, SRD_A, S_WS, f"s{S_T0}", WS_ACT2 + 2048 * LD_ACT2)
    a(f"s_lshl_b32 s{S_OFFA}, s{S_TYPE}, 13")
    a(f"s_cmp_eq_u32 s{S_TYPE}, 0")
    a(f"s_cselect_b32 s{S_T4}, s{S_WO}, s{S_W2}")
    a(f"s_cselect_b32 s{S_T5}, s{S_WO+1}, s{S_W2+1}")
    a(f"s_mov_b32 s{S_T6}, {7*MB}")
    a(f"s_cselect_b32 s{S_T6}, {8*MB}, s{S_T6}")
    a(f"s_cselect_b32 s{S_CNT}, {64-XS}, {56+XS}")
    a(f"s_cselect_b32 s{S_KSW}, -1, 56")
    a(f"s_lshl_b32 s{S_T0}, s{S_NT}, 8")
    make_srd(a, SRD_W, S_T4, f"s{S_T0}", f"s{S_T6}")
    make_srd(a, S_ALT, S_WO, f"s{S_T0}", 8 * MB)
    a(f"s_mov_b32 s{S_OFFW}, 0")
    a(f"v_lshrrev_b32 v{T}, 3, v{L}")
    a(f"v_lshrrev_b32 v{T+1}, 4, v{L}")
    a(f"v_and_b32 v{T+2}, 7, v{L}")
    a(f"v_xor_b32 v{T+2}, v{T+2}, v{T+1}")
    a(f"v_lshlrev_b32 v{T+2}, 4, v{T+2}")
    a(f"v_xor_b32 v{T+3}, 64, v{T+2}")
    a(f"s_lshl_b32 s{S_T0}, s{S_W}, 4")
    a(f"v_add_u32 v{T}, s{S_T0}, v{T}")
    a(f"s_mov_b32 s{S_T1}, {LD_ACT2}")
    a(f"v_mul_lo_u32 v{T}, v{T}, s{S_T1}")
    a(f"v_add_u32 v{B_ADMA}, v{T}, v{T+2}")
    a(f"v_add_u32 v{T}, {8*LD_ACT2}, v{T}")
    a(f"v_add_u32 v{B_ADMA+1}, v{T}, v{T+3}")
    a(f"v_and_b32 v{T+2}, 15, v{L}")
    a(f"v_lshlrev_b32 v{T+3}, 1, v{T+1}")
    a(f"v_xor_b32 v{T+2}, v{T+2}, v{T+3}")
    a(f"s_and_b32 s{S_T0}, s{S_W}, 1")
    a(f"s_lshl_b32 s{S_T0}, s{S_T0}, 3")
    a(f"v_xor_b32 v{T+2}, s{S_T0}, v{T+2}")
    a(f"v_lshlrev_b32 v{T+2}, 4, v{T+2}")
    a(f"s_lshl_b32 s{S_T0}, s{S_W}, 3")
    a(f"v_add_u32 v{T}, s{S_T0}, v{T+1}")
    a(f"v_lshlrev_b32 v{T}, 11, v{T}")
    a(f"v_add_u32 v{B_WDMA}, v{T}, v{T+2}")
    a(f"v_add_u32 v{B_WDMA+1}, {4*2048}, v{B_WDMA}")
    a(f"s_lshl_b32 s{S_WR}, s{S_W}, 11")
    a(f"s_add_u32 s{S_T6}, s{S_WR}, {NS*STB}")
    a(f"s_mov_b32 s{S_T7}, {STB}")
    for st in range(NS):
        for i in range(4):
            b_dma(a, i)
        b_dma_adv(a)
    a(f"v_and_b32 v{T}, 15, v{L}")
    a(f"v_lshrrev_b32 v{T+2}, 1, v{T}")
    a(f"s_lshl_b32 s{S_T0}, s{S_G}, 2")
    a(f"v_add_u32 v{T+3}, s{S_T0}, v{T+1}")
    a(f"v_xor_b32 v{T+2}, v{T+2}, v{T+3}")
    a(f"v_lshlrev_b32 v{T+2}, 4, v{T+2}")
    a(f"s_lshl_b32 s{S_T0}, s{S_WM}, 6")
    a(f"v_add_u32 v{T+3}, s{S_T0}, v{T}")
    a(f"v_lshlrev_b32 v{T+3}, 7, v{T+3}")
    a(f"v_add_u32 v{T+3}, v{T+3}, v{T+2}")
    a(f"s_lshl_b32 s{S_T0}, s{S_G}, 12")
    a(f"s_sub_u32 s{S_T1}, 4096, s{S_T0}")
    a(f"v_add_u32 v{B_ARD}, s{S_T0}, v{T+3}")
    a(f"v_add_u32 v{B_ARD+1}, s{S_T1}, v{T+3}")
    a(f"v_lshrrev_b32 v{T+2}, 2, v{T}")
    a(f"v_lshlrev_b32 v{T+3}, 3, v{T+1}")
    a(f"v_add_u32 v{T+3}, v{T+3}, v{T+2}")
    a(f"s_lshl_b32 s{S_T0}, s{S_G}, 5")
    a(f"v_add_u32 v{T+3}, s{S_T0}, v{T+3}")
    a(f"v_lshlrev_b32 v{T+3}, 8, v{T+3}")
    a(f"v_and_b32 v{T+4}, 3, v{L}")
    a(f"v_lshlrev_b32 v{T+4}, 3, v{T+4}")
    a(f"v_add_u32 v{T+3}, v{T+3}, v{T+4}")
    a(f"v_and_b32 v{T+4}, 1, v{T+1}")
    a(f"v_xor_b32 v{T+4}, s{S_WN}, v{T+4}")
    a(f"v_lshlrev_b32 v{T+4}, 7, v{T+4}")
    a(f"v_add_u32 v{T+3}, v{T+3}, v{T+4}")
    for nb in range(4):
        a(f"v_xor_b32 v{T+4}, {nb}, v{T+2}")
        a(f"v_lshlrev_b32 v{T+4}, 5, v{T+4}")
        a(f"v_add_u32 v{B_WRD+nb}, v{T+3}, v{T+4}")
    a(f"s_mov_b32 s{S_RD}, 0")
    for i in range(0, 64, 2):
        a(f"v_mov_b64 {vr(B_ACC+i,2)}, 0")
    a(f"s_waitcnt vmcnt({4*(NS-1)})")
    a("s_barrier")
    for r in b_reads(0):
        a(r)
    tail = NS + (NS & 1)
    a(f"s_sub_u32 s{S_CNT}, s{S_CNT}, {tail}")
    a(f"s_lshr_b32 s{S_CNT}, s{S_CNT}, 1")
    a.label("out_loop")
    if XS:
        a(f"s_lshl_b32 s{S_T0}, s{S_W}, 8")
        a(f"s_add_u32 s{S_T0}, s{S_T0}, s{S_CNT}")
        a(f"s_lshl_b32 s{S_T1}, s{S_TYPE}, 16")
        a(f"s_add_u32 s{S_T0}, s{S_T0}, s{S_T1}")
        a(f"s_cmp_lg_u32 s{S_T0}, {65536 + (XS + 2) // 2 + 1}")
        a("s_cbranch_scc1 out_nock")
        flag_srd(a, SRD_X)
        flag_check(a, SRD_X, T + 43, T + 46)
        a.label("out_nock")
    b_step(a, 0, True, 4 * (NS - 2))
    b_step(a, 1, True, 4 * (NS - 2))
    a(f"s_sub_u32 s{S_CNT}, s{S_CNT}, 1")
    a(f"s_cmp_lg_u32 s{S_CNT}, 0")
    a("s_cbranch_scc1 out_loop")
    PX = 224
    def part_setup(a):
        a(f"s_lshl_b32 s{S_T0}, s{S_TILE}, 16")
        a(f"s_add_u32 s{S_T0}, s{S_T0}, {WS_PART}")
        make_srd(a, SRD_P, S_WS, f"s{S_T0}", WS_PART + 8 * MB)
        a(f"v_lshlrev_b32 v{T+14}, 4, v{L}")
        a(f"s_lshl_b32 s4, s{S_W}, 13")
        a(f"s_add_u32 s5, s4, 4096")
        a(f"s_lshl_b32 s6, s{S_TILE}, 7")
        a(f"s_add_u32 s6, s6, {F_PART}")
        a(f"v_mov_b32 v{T+10}, s6")
    def part_check(a):
        l = a.uid("Lnpc")
        a(f"s_add_u32 s{S_T0}, s{S_W}, s{S_TYPE}")
        a(f"s_cmp_lg_u32 s{S_T0}, 0")
        a(f"s_cbranch_scc1 {l}")
        flag_srd(a, SRD_O)
        flag_check(a, SRD_O, T + 10, T + 12)
        a.label(l)
    def part_load(a):
        l = a.uid("Lnpl")
        a(f"s_cmp_lg_u32 s{S_TYPE}, 0")
        a(f"s_cbranch_scc1 {l}")
        for i in range(8):
            a(f"buffer_load_dwordx4 {vr(PX+4*i,4)}, v{T+14}, s[{SRD_P}:{SRD_P+3}], s{4 if i < 4 else 5} offen offset:{(i&3)*1024} sc0 sc1")
        a.label(l)
    def x_load(a):
        a(f"s_cmp_eq_u32 s{S_TYPE}, 0")
        a("s_cbranch_scc1 out_nox")
        out_base(a)
        make_srd(a, SRD_X, S_X, 0, 4 * MB)
        a(f"v_and_b32 v{T+4}, 15, v{L}")
        a(f"v_lshlrev_b32 v{T+4}, 11, v{T+4}")
        a(f"v_lshrrev_b32 v{T+5}, 4, v{L}")
        a(f"v_lshlrev_b32 v{T+5}, 3, v{T+5}")
        a(f"v_add_u32 v{T+4}, v{T+4}, v{T+5}")
        for b in range(2):
            for nb in range(4):
                a(f"buffer_load_dwordx2 {vr(224+8*b+2*nb,2)}, v{T+4}, s[{SRD_X}:{SRD_X+3}], s{S_T3 if b == 0 else S_T2} offen offset:{32*nb}")
        make_srd(a, SRD_X, S_B2, 0, 2048)
        for nb in range(4):
            a(f"buffer_load_dwordx2 {vr(240+2*nb,2)}, v{T+5}, s[{SRD_X}:{SRD_X+3}], s{S_T1} offen offset:{32*nb}")
        a.label("out_nox")
    part_setup(a)
    for j in range(tail):
        rem = tail - j
        dma = rem > NS
        vm = 4 * max(0, min(NS - 2, rem - 2))
        b_step(a, j & 1, dma, vm, rd=(rem > 1), before_bar=(part_check if rem == 2 else None), after_bar=(part_load if rem == 2 else x_load if rem == NS else None), fx=(12 if rem < NS else 0))
    a("s_nop 7")
    a("s_nop 1")
    a("s_barrier")
    a(f"s_xor_b32 s{S_T1}, s4, {4<<13}")
    a(f"v_add_u32 v{T+1}, s{S_T1}, v{T+14}")
    a(f"v_add_u32 v{T}, s4, v{T+14}")
    for i in range(8):
        a(f"ds_write_b128 v{T}, {vr(B_ACC+32+4*i,4)} offset:{i*1024}")
    a("s_waitcnt lgkmcnt(0)")
    a("s_barrier")
    for i in range(8):
        a(f"ds_read_b128 {vr(B_X+4*i,4)}, v{T+1} offset:{i*1024}")
    a(f"s_cmp_eq_u32 s{S_TYPE}, 0")
    a("s_cbranch_scc1 out_consumer")
    a("s_waitcnt vmcnt(0)")
    for b in range(2):
        for nb in range(4):
            for j in range(2):
                for src in (PX + 8 * b + 2 * nb + j, PX + 16 + 2 * nb + j):
                    oo = bacc(b, nb) + 2 * j
                    a(f"v_lshlrev_b32 v{T+6}, 16, v{src}")
                    a(f"v_and_b32 v{T+7}, 0xffff0000, v{src}")
                    a(f"v_pk_add_f32 {vr(oo,2)}, {vr(oo,2)}, {vr(T+6,2)}")
    for i in range(8):
        a(f"s_waitcnt lgkmcnt({7-i})")
        for e in (0, 2):
            a(f"v_pk_add_f32 {vr(B_ACC+4*i+e,2)}, {vr(B_ACC+4*i+e,2)}, {vr(B_X+4*i+e,2)}")
        a(f"buffer_store_dwordx4 {vr(B_ACC+4*i,4)}, v{T+14}, s[{SRD_P}:{SRD_P+3}], s{4 if i < 4 else 5} offen offset:{(i&3)*1024} sc0 sc1")
    a("s_waitcnt vmcnt(0)")
    a("s_barrier")
    a(f"s_cmp_lg_u32 s{S_W}, 0")
    a("s_cbranch_scc1 out_fin")
    flag_srd(a, SRD_O)
    flag_store(a, SRD_O, 6, T + 2)
    a("s_branch out_fin")
    a.label("out_consumer")
    out_base(a)
    make_srd(a, SRD_O, S_OUT, 0, 4 * MB)
    epi_voff_P(a, T + 8, 2048)
    a("s_waitcnt vmcnt(0)")
    for e in range(0, 32, 2):
        a(f"v_pk_add_f32 {vr(B_ACC+e,2)}, {vr(B_ACC+e,2)}, {vr(PX+e,2)}")
    a("s_waitcnt lgkmcnt(0)")
    for e in range(0, 32, 2):
        a(f"v_pk_add_f32 {vr(B_ACC+e,2)}, {vr(B_ACC+e,2)}, {vr(B_X+e,2)}")
    OSF = os.environ.get("OSF", "plain")
    if OSF:
        import gen_proj3 as P3
        P3.line_voff(a, T + 8, T + 9, 2048)
    for b in range(2):
        for p in range(2):
            t = T + 16 + 4 * (2 * b + p)
            b0, b1 = bacc(b, 2 * p), bacc(b, 2 * p + 1)
            a(f"v_cvt_pk_bf16_f32 v{t}, v{b0}, v{b0+1}")
            a(f"v_cvt_pk_bf16_f32 v{t+1}, v{b0+2}, v{b0+3}")
            a(f"v_cvt_pk_bf16_f32 v{t+2}, v{b1}, v{b1+1}")
            a(f"v_cvt_pk_bf16_f32 v{t+3}, v{b1+2}, v{b1+3}")
            a("s_nop 1")
            a(f"v_permlane16_swap_b32 v{t}, v{t+2}")
            a(f"v_permlane16_swap_b32 v{t+1}, v{t+3}")
            a("s_nop 0")
            if not OSF:
                a(f"buffer_store_dwordx4 {vr(t,4)}, v{T+8}, s[{SRD_O}:{SRD_O+3}], s{S_T3 if b == 0 else S_T2} offen offset:{p*64}")
        if OSF:
            t0 = T + 16 + 8 * b
            P3.line_xchg(a, t0, t0 + 4, bacc(b, 0))
            for p in range(2):
                a(f"buffer_store_dwordx4 {vr(t0+4*p,4)}, v{T+8+p}, s[{SRD_O}:{SRD_O+3}], s{S_T3 if b == 0 else S_T2} offen {OSF.replace('plain','')}")
    a.label("out_fin")
```

```python
import math, os
from asmlib import *
from gen_common import *
from gen_gemm import layernorm_compute, epi_voff_P, V_L, V_AF, V_WF, V_TMP, V_ACC, acc, V_BIAS
import gen_attn6 as AT

KNAME = NAME + '_kernel'
V_ARD = 2
V_WRD = 4
V_AD = 8
V_WD = 10
V_STO = 0
S_HALF = 63
S_A0, S_A1, S_W0, S_W1o = 64, 65, 66, 67
S_A16, S_W4a, S_W4b, S_WSa, S_WSb = 4, 5, 6, 7, 8
S_FW, S_ROW = 9, 10
S_SL = 82
S_S1, S_S2, S_STO = 84, 85, 83
S_LW = 81
SRD_W2 = 96
SRD_D = 52 + 0
T = V_TMP
PFV, PFD = T + 40, T + 20
PD = os.environ.get('PD', '') == '1'
KPF = int(os.environ.get('KPF', '0'))
BURST = os.environ.get('BURST', '0') == '1'
EPF = os.environ.get('EPF', '0') == '1'
PFT = int(os.environ.get("PFT", "48"))

def dma(a, p, j):
    q = j & 3
    if j < 8:
        h = j >> 2
        so = S_A0 + h
        if q >> 1:
            a(f"s_add_u32 s{S_T0}, s{so}, s{S_A16}"); so = S_T0
        a(f"s_add_u32 m0, s{S_LW}, {p*32768 + h*16384 + q*1024}")
        a("s_nop 0")
        a(f"buffer_load_dwordx4 v{V_AD+(q&1)}, s[{SRD_A}:{SRD_A+3}], s{so} offen lds")
    else:
        h = (j - 8) >> 2
        so = S_W0 + h
        if q & 1:
            a(f"s_add_u32 s{S_T0}, s{so}, s{S_W4a+h}"); so = S_T0
        srd = SRD_W2 if h else SRD_W
        a(f"s_add_u32 m0, s{S_LW}, {65536 + p*32768 + h*16384 + q*1024}")
        a("s_nop 0")
        a(f"buffer_load_dwordx4 v{V_WD+2*h+(q>>1)}, s[{srd}:{srd+3}], s{so} offen lds")

def dma_adv(a):
    a(f"s_add_u32 s{S_A0}, s{S_A0}, 128")
    a(f"s_add_u32 s{S_A1}, s{S_A1}, 128")
    a(f"s_add_u32 s{S_W0}, s{S_W0}, s{S_WSa}")
    a(f"s_add_u32 s{S_W1o}, s{S_W1o}, s{S_WSb}")

def dma_addrs(a, lda, ldwa, ldwb):
    L = V_L
    a(f"v_lshrrev_b32 v{T}, 3, v{L}")
    a(f"v_lshrrev_b32 v{T+1}, 4, v{L}")
    a(f"v_and_b32 v{T+2}, 7, v{L}")
    a(f"v_xor_b32 v{T+2}, v{T+2}, v{T+1}")
    a(f"v_lshlrev_b32 v{T+2}, 4, v{T+2}")
    a(f"v_xor_b32 v{T+3}, 64, v{T+2}")
    a(f"s_lshl_b32 s{S_T0}, s{S_W}, 5")
    a(f"v_add_u32 v{T}, s{S_T0}, v{T}")
    a(f"s_mov_b32 s{S_T1}, {lda}")
    a(f"v_mul_lo_u32 v{T}, v{T}, s{S_T1}")
    a(f"v_add_u32 v{V_AD}, v{T}, v{T+2}")
    a(f"v_add_u32 v{T}, {8*lda}, v{T}")
    a(f"v_add_u32 v{V_AD+1}, v{T}, v{T+3}")
    a(f"s_mov_b32 s{S_A16}, {16*lda}")
    a(f"v_and_b32 v{T+2}, 15, v{L}")
    a(f"v_lshlrev_b32 v{T+3}, 1, v{T+1}")
    a(f"v_xor_b32 v{T+2}, v{T+2}, v{T+3}")
    a(f"v_lshlrev_b32 v{T+2}, 4, v{T+2}")
    a(f"v_xor_b32 v{T+3}, 128, v{T+2}")
    a(f"s_lshl_b32 s{S_T0}, s{S_W}, 4")
    a(f"v_add_u32 v{T+4}, s{S_T0}, v{T+1}")
    for h, ld in enumerate((ldwa, ldwb)):
        a(f"s_mov_b32 s{S_T1}, {ld}")
        a(f"v_mul_lo_u32 v{T}, v{T+4}, s{S_T1}")
        a(f"v_add_u32 v{V_WD+2*h}, v{T}, v{T+2}")
        a(f"v_add_u32 v{T}, {8*ld}, v{T}")
        a(f"v_add_u32 v{V_WD+2*h+1}, v{T}, v{T+3}")
        a(f"s_mov_b32 s{S_W4a+h}, {4*ld}")
        a(f"s_mov_b32 s{S_WSa+h}, {64*ld}")

def read_addrs(a):
    L = V_L
    a(f"v_lshrrev_b32 v{T+1}, 4, v{L}")
    a(f"v_and_b32 v{T}, 15, v{L}")
    a(f"v_lshrrev_b32 v{T+2}, 1, v{T}")
    a(f"v_xor_b32 v{T+2}, v{T+2}, v{T+1}")
    a(f"v_lshlrev_b32 v{T+2}, 4, v{T+2}")
    a(f"s_lshl_b32 s{S_T0}, s{S_WM}, 7")
    a(f"v_add_u32 v{T+3}, s{S_T0}, v{T}")
    a(f"v_lshlrev_b32 v{T+3}, 7, v{T+3}")
    a(f"v_add_u32 v{V_ARD}, v{T+3}, v{T+2}")
    a(f"v_xor_b32 v{V_ARD+1}, 64, v{V_ARD}")
    a(f"v_lshrrev_b32 v{T+2}, 2, v{T}")
    a(f"v_lshlrev_b32 v{T+3}, 3, v{T+1}")
    a(f"v_add_u32 v{T+3}, v{T+3}, v{T+2}")
    a(f"v_lshlrev_b32 v{T+3}, 8, v{T+3}")
    a(f"s_lshl_b32 s{S_T0}, s{S_HALF}, 14")
    a(f"s_add_u32 s{S_T0}, s{S_T0}, 0x10000")
    a(f"v_add_u32 v{T+3}, s{S_T0}, v{T+3}")
    a(f"v_and_b32 v{T+4}, 3, v{L}")
    a(f"v_lshlrev_b32 v{T+4}, 3, v{T+4}")
    a(f"v_add_u32 v{T+3}, v{T+3}, v{T+4}")
    a(f"v_and_b32 v{T+4}, 1, v{T+1}")
    a(f"v_xor_b32 v{T+4}, s{S_WN}, v{T+4}")
    a(f"v_lshlrev_b32 v{T+4}, 7, v{T+4}")
    a(f"v_add_u32 v{T+3}, v{T+3}, v{T+4}")
    for nb in range(4):
        a(f"v_xor_b32 v{T+4}, {nb}, v{T+2}")
        a(f"v_lshlrev_b32 v{T+4}, 5, v{T+4}")
        a(f"v_add_u32 v{V_WRD+nb}, v{T+3}, v{T+4}")

def rd_a(a, p, ks, mb):
    a(f"ds_read_b128 {vr(V_AF+4*mb,4)}, v{V_ARD+ks} offset:{p*32768 + mb*2048}")
def rd_w(a, p, ks, wset, nb):
    for h in range(2):
        a(f"ds_read_b64_tr_b16 {vr(V_WF+16*wset+4*nb+2*h,2)}, v{V_WRD+nb} offset:{p*32768 + ks*8192 + h*1024}")
def mfma4(a, mb, wset, swap, czero=False):
    for nb in range(4):
        d = vr(acc(mb, nb), 4); w = vr(V_WF + 16 * wset + 4 * nb, 4); x = vr(V_AF + 4 * mb, 4)
        c = "0" if czero else d
        a(f"v_mfma_f32_16x16x32_bf16 {d}, {x}, {w}, {c}" if swap else f"v_mfma_f32_16x16x32_bf16 {d}, {w}, {x}, {c}")

def kstep(a, p, swap, dma_on=True, last=False, vm=0, fvm=None, w0x=0, start=None, tail=None, before_bar=None, czero=False):
    if start: start(a)
    a("s_waitcnt lgkmcnt(4)")
    for mb in range(8):
        if mb == 4: a("s_waitcnt lgkmcnt(12)")
        mfma4(a, mb, 0, swap, czero)
        rd_a(a, p, 1, mb)
        if mb < 4: rd_w(a, p, 1, 1, mb)
    a("s_waitcnt lgkmcnt(4)")
    mfma4(a, 0, 1, swap)
    mfma4(a, 1, 1, swap)
    if last:
        a("s_waitcnt lgkmcnt(0)")
        for mb in range(2, 8): mfma4(a, mb, 1, swap)
        return
    l1, l2 = a.uid("Lfw"), a.uid("Lfw")
    a("s_waitcnt lgkmcnt(0)")
    a(f"s_cbranch_vccnz {l1}")
    if w0x:
        a(f"s_waitcnt vmcnt({vm + w0x})")
        a(f"s_cmp_eq_u32 s{S_W}, 0")
        a(f"s_cbranch_scc1 {l2}")
    a(f"s_waitcnt vmcnt({vm})")
    if fvm is not None:
        a(f"s_branch {l2}")
    a.label(l1)
    if fvm is not None:
        a(f"s_waitcnt vmcnt({fvm})")
    a.label(l2)
    if before_bar: before_bar(a)
    a("s_barrier")
    q = p ^ 1
    rd_a(a, q, 0, 0); rd_a(a, q, 0, 1); rd_w(a, q, 0, 0, 0); rd_w(a, q, 0, 0, 1)
    dl = list(range(16)) if dma_on else []
    for mb in range(2, 8):
        mfma4(a, mb, 1, swap)
        rd_a(a, q, 0, mb)
        if mb < 4: rd_w(a, q, 0, 0, mb)
        if dl:
            lsk = a.uid("Lnd")
            a(f"s_cbranch_vccnz {lsk}")
            for _ in range(2 if mb < 4 else 3): dma(a, p, dl.pop(0))
            a.label(lsk)
    assert not dl
    if dma_on: dma_adv(a)
    if tail: tail(a)

def quad_tmp(j): return T + 4 * (j if j < 12 else j - 12)
def pack_quad(a, j, swap):
    t, p = j >> 1, j & 1
    q = quad_tmp(j)
    if not swap:
        b0, b1 = acc(t, 2 * p), acc(t, 2 * p + 1)
    else:
        nb, mp = t & 3, 2 * (t >> 2) + p
        b0, b1 = acc(2 * mp, nb), acc(2 * mp + 1, nb)
    a(f"v_cvt_pk_bf16_f32 v{q}, v{b0}, v{b0+1}")
    a(f"v_cvt_pk_bf16_f32 v{q+1}, v{b0+2}, v{b0+3}")
    a(f"v_cvt_pk_bf16_f32 v{q+2}, v{b1}, v{b1+1}")
    a(f"v_cvt_pk_bf16_f32 v{q+3}, v{b1+2}, v{b1+3}")
    a("s_nop 1")
    op = "v_permlane32_swap_b32" if swap else "v_permlane16_swap_b32"
    a(f"{op} v{q}, v{q+2}")
    a(f"{op} v{q+1}, v{q+3}")
def line_xchg(a, q0, q1, tmp):
    for d in range(4): a(f"v_mov_b32 v{tmp+d}, v{q1+d}")
    for d in range(4): a(f"v_mov_b32_dpp v{q1+d}, v{q0+d} row_ror:8 row_mask:0xf bank_mask:0x3")
    for d in range(4): a(f"v_mov_b32_dpp v{q0+d}, v{tmp+d} row_ror:8 row_mask:0xf bank_mask:0xc")
def line_voff(a, v0, v1, ld):
    a(f"v_and_b32 v{T+4}, 8, v{V_L}")
    a(f"s_mov_b32 s{S_T0}, {ld - 8}")
    a(f"v_mul_lo_u32 v{T+4}, v{T+4}, s{S_T0}")
    a(f"v_sub_u32 v{v0}, v{v0}, v{T+4}")
    a(f"v_add_u32 v{v1}, {8*ld}, v{v0}")
V_STO2 = 14
def store_pair(a, t, only=None):
    for p in range(2):
        if only is None or only == p:
            a(f"buffer_store_dwordx4 {vr(quad_tmp(2*t+p),4)}, v{V_STO2 if p else V_STO}, s[{SRD_O}:{SRD_O+3}], s{S_STO} offen sc0 sc1")
    if t < 7 and only != 0:
        a(f"s_add_u32 s{S_STO}, s{S_STO}, s{S_S2 if t == 3 else S_S1}")

def gelu_pk(a, mb, nb):
    C0 = V_AF + 8; ONE = V_AF + 10
    for h in range(2):
        x = acc(mb, nb) + 2 * h; t = V_AF + 2 * h + 4 * (nb & 1)
        a(f"v_pk_add_f32 {vr(x,2)}, {vr(x,2)}, {vr(V_BIAS+4*nb+2*h,2)}")
        a(f"v_pk_mul_f32 {vr(t,2)}, {vr(x,2)}, {vr(x,2)}")
        a(f"v_pk_fma_f32 {vr(t,2)}, {vr(t,2)}, s[{S_T4}:{S_T4+1}], {vr(C0,2)}")
        a(f"v_pk_mul_f32 {vr(t,2)}, {vr(t,2)}, {vr(x,2)}")
        a(f"v_exp_f32 v{t}, v{t}")
        a(f"v_exp_f32 v{t+1}, v{t+1}")
    for h in range(2):
        t = V_AF + 2 * h + 4 * (nb & 1)
        a(f"v_pk_add_f32 {vr(t,2)}, {vr(t,2)}, {vr(ONE,2)}")
        a(f"v_rcp_f32 v{t}, v{t}")
        a(f"v_rcp_f32 v{t+1}, v{t+1}")
    for h in range(2):
        x = acc(mb, nb) + 2 * h; t = V_AF + 2 * h + 4 * (nb & 1)
        a(f"v_pk_mul_f32 {vr(x,2)}, {vr(x,2)}, {vr(t,2)}")

def fprefetch(a, base, total, per_kb, js, guard=True):
    lsk = a.uid("Lnofp")
    if guard: a(f"s_cbranch_vccz {lsk}")
    make_srd(a, SRD_X, base, 0, total)
    a(f"s_mul_i32 s{S_T0}, s{S_FW}, {per_kb}")
    a(f"s_add_u32 s{S_T1}, s{S_T0}, 4096")
    for j in js:
        a(f"buffer_load_dwordx4 {vr(PFD,4)}, v{PFV}, s[{SRD_X}:{SRD_X+3}], s{S_T0 if j < 4 else S_T1} offen offset:{(j&3)*1024}")
    a.label(lsk)

def gen_proj(a):
    kstart(a, KNAME)
    a.label("proj_kernel")
    a("s_cmp_ge_u32 s2, 256")
    a("s_cbranch_scc1 fused_end")
    stamp(a, 0)
    load_args(a)
    L = V_L
    a(f"v_and_b32 v{L}, 63, v0")
    a("v_lshrrev_b32 v2, 6, v0")
    a("s_nop 0")
    a(f"v_readfirstlane_b32 s{S_W}, v2")
    a("s_nop 3")
    a(f"s_lshr_b32 s{S_HALF}, s{S_W}, 2")
    a(f"s_bfe_u32 s{S_WM}, s{S_W}, 0x10001")
    a(f"s_and_b32 s{S_WN}, s{S_W}, 1")
    a(f"s_lshl_b32 s{S_LW}, s{S_W}, 12")
    a(f"s_and_b32 s{S_T0}, s2, 7")
    a(f"s_lshr_b32 s{S_T1}, s2, 3")
    a(f"s_and_b32 s{S_MT}, s{S_T1}, 7")
    a(f"s_lshr_b32 s{S_T2}, s{S_T1}, 3")
    a(f"s_lshl_b32 s{S_NT}, s{S_T0}, 2")
    a(f"s_add_u32 s{S_NT}, s{S_NT}, s{S_T2}")
    a(f"s_cmp_lg_u32 s{S_HALF}, 0")
    a("s_cselect_b64 vcc, -1, 0")
    a(f"s_lshl_b32 s{S_FW}, s2, 2")
    a(f"s_and_b32 s{S_T0}, s{S_W}, 3")
    a(f"s_add_u32 s{S_FW}, s{S_FW}, s{S_T0}")
    a(f"s_lshl_b32 s{S_ROW}, s{S_FW}, 1")
    a(f"s_lshl_b32 s{S_FW}, s{S_FW}, 10")
    a(f"v_lshlrev_b32 v{PFV}, 4, v{L}")
    a("s_waitcnt lgkmcnt(0)")
    a("s_cbranch_vccnz proj_free0")
    a("s_setprio 1")
    a(f"s_add_u32 s{S_T0}, s2, s{S_W}")
    a(f"s_cmp_lg_u32 s{S_T0}, 0")
    a("s_cbranch_scc1 proj_notok")
    make_srd(a, SRD_X, S_DBG, 0, 256)
    a("s_memrealtime s[86:87]")
    a("s_waitcnt lgkmcnt(0)")
    a("s_or_b32 s86, s86, 1")
    a(f"v_mov_b32 v{T}, s86")
    a(f"v_mov_b32 v{T+1}, s87")
    a(f"v_mov_b32 v{T+2}, 0")
    a("s_mov_b64 exec, 1")
    a(f"buffer_store_dwordx2 {vr(T,2)}, v{T+2}, s[{SRD_X}:{SRD_X+3}], 0 offen sc0 sc1")
    a("s_mov_b64 exec, -1")
    a.label("proj_notok")
    a.label("proj_free0")
    a(f"s_lshl_b32 s{S_T0}, s{S_MT}, 18")
    make_srd(a, SRD_A, S_CKV, f"s{S_T0}", 2 * MB)
    a(f"s_cmp_lt_u32 s{S_NT}, 16")
    a(f"s_cselect_b32 s{S_T4}, s{S_WUK}, s{S_WUV}")
    a(f"s_cselect_b32 s{S_T5}, s{S_WUK+1}, s{S_WUV+1}")
    a(f"s_and_b32 s{S_T6}, s{S_NT}, 15")
    a(f"s_lshl_b32 s{S_T0}, s{S_T6}, 9")
    make_srd(a, SRD_W, S_T4, f"s{S_T0}", 4 * MB)
    a(f"s_add_u32 s{S_T0}, s{S_T0}, 256")
    make_srd(a, SRD_W2, S_T4, f"s{S_T0}", 4 * MB)
    dma_addrs(a, 1024, 8192, 8192)
    a(f"s_mov_b32 s{S_A0}, 0")
    a(f"s_mov_b32 s{S_A1}, {128*1024}")
    a(f"s_mov_b32 s{S_W0}, 0")
    a(f"s_mov_b32 s{S_W1o}, 0")
    a("s_cbranch_vccnz proj_free1")
    for st in range(2):
        for j in range(16): dma(a, st, j)
        dma_adv(a)
    a("s_branch proj_join1")
    a.label("proj_free1")
    dma_adv(a); dma_adv(a)
    make_srd(a, SRD_X, S_X, 0, 4 * MB)
    a(f"s_lshl_b32 s{S_T0}, s{S_ROW}, 11")
    for j in range(4):
        a(f"buffer_load_dwordx4 {vr(T+24+4*j,4)}, v{PFV}, s[{SRD_X}:{SRD_X+3}], s{S_T0} offen offset:{1024*j}")
    a("s_getpc_b64 s[86:87]")
    a.label("proj_pc")
    a(f"s_sub_u32 s{SRD_X}, s86, proj_pc-proj_kernel")
    a(f"s_subb_u32 s{SRD_X+1}, s87, 0")
    a(f"s_and_b32 s{SRD_X+1}, s{SRD_X+1}, 0xffff")
    a(f"s_mov_b32 s{SRD_X+2}, text_end-proj_kernel")
    a(f"s_mov_b32 s{SRD_X+3}, 0x00020000")
    a(f"s_lshr_b32 s{S_T0}, s2, 3")
    a(f"s_lshl_b32 s{S_T0}, s{S_T0}, 2")
    a(f"s_and_b32 s{S_T1}, s{S_W}, 3")
    a(f"s_add_u32 s{S_T0}, s{S_T0}, s{S_T1}")
    a(f"s_lshl_b32 s{S_T0}, s{S_T0}, 10")
    a(f"buffer_load_dwordx4 {vr(PFD,4)}, v{PFV}, s[{SRD_X}:{SRD_X+3}], s{S_T0} offen")
    if KPF == 0:
        fprefetch(a, S_WUK, 4 * MB, 4, [0, 1, 2, 3], guard=False)
        fprefetch(a, S_WUV, 4 * MB, 4, [0, 1, 2, 3], guard=False)
        fprefetch(a, S_CKV, 2 * MB, 2, [0, 1], guard=False)
    a.label("proj_join1")
    a(f"s_mul_i32 s{S_ROW}, s{S_ROW}, {LD_XN}")
    a(f"s_add_u32 s{S_ROW+1}, s{S_ROW}, {LD_XN}")
    read_addrs(a)
    a(f"s_and_b32 s{S_T6}, s{S_NT}, 15")
    a(f"s_lshl_b32 s{S_T0}, s{S_T6}, 1")
    a(f"s_add_u32 s{S_T0}, s{S_T0}, s{S_HALF}")
    a(f"s_lshl_b32 s{S_STO}, s{S_T0}, 19")
    a(f"s_lshl_b32 s{S_T0}, s{S_MT}, 16")
    a(f"s_add_u32 s{S_STO}, s{S_STO}, s{S_T0}")
    a(f"s_lshl_b32 s{S_T0}, s{S_WM}, 15")
    a(f"s_add_u32 s{S_STO}, s{S_STO}, s{S_T0}")
    a(f"s_lshr_b32 s{S_T0}, s{S_NT}, 3")
    a(f"s_sub_u32 s{S_SL}, s{S_NT}, s{S_T0}")
    a(f"s_and_b32 s{S_T0}, s{S_NT}, 7")
    a(f"s_cmp_eq_u32 s{S_T0}, 7")
    a(f"s_cselect_b32 s{S_SL}, 99, s{S_SL}")
    lw = a.uid("Lw")
    a(f"s_cbranch_vccnz {lw}")
    a("s_waitcnt vmcnt(16)")
    a.label(lw)
    a("s_barrier")
    if PD: stamp(a, 1)
    if KPF == 1:
        fprefetch(a, S_WUK, 4 * MB, 4, [0, 1, 2, 3])
        fprefetch(a, S_WUV, 4 * MB, 4, [0, 1, 2, 3])
        fprefetch(a, S_CKV, 2 * MB, 2, [0, 1])
    rd_a(a, 0, 0, 0); rd_a(a, 0, 0, 1); rd_w(a, 0, 0, 0, 0); rd_w(a, 0, 0, 0, 1)
    rd_a(a, 0, 0, 2); rd_w(a, 0, 0, 0, 2); rd_a(a, 0, 0, 3); rd_w(a, 0, 0, 0, 3)
    for mb in range(4, 8): rd_a(a, 0, 0, mb)

    def tok_load(a):
        a(f"v_mov_b32 v{T+42}, 0")
        lsk = w0_begin(a)
        make_srd(a, SRD_X, S_DBG, 0, 256)
        a(f"buffer_load_dwordx2 {vr(T+44,2)}, v{T+42}, s[{SRD_X}:{SRD_X+3}], 0 offen sc0 sc1")
        a.label(lsk)
    def ln_signal(a):
        lp = a.uid("Ltok"); ok = a.uid("Ltokok")
        lsk = w0_begin(a)
        make_srd(a, SRD_X, S_DBG, 0, 256)
        a(f"s_mov_b32 s{S_SPIN}, 0x400000")
        a.label(lp)
        a(f"v_readfirstlane_b32 s{S_TOK}, v{T+44}")
        a(f"v_readfirstlane_b32 s{S_TOK+1}, v{T+45}")
        a("s_nop 3")
        a(f"s_cmp_lg_u32 s{S_TOK}, 0")
        a(f"s_cbranch_scc1 {ok}")
        a("s_sleep 2")
        a(f"buffer_load_dwordx2 {vr(T+44,2)}, v{T+42}, s[{SRD_X}:{SRD_X+3}], 0 offen sc0 sc1")
        a("s_waitcnt vmcnt(0)")
        a(f"s_sub_u32 s{S_SPIN}, s{S_SPIN}, 1")
        a(f"s_cmp_lg_u32 s{S_SPIN}, 0")
        a(f"s_cbranch_scc1 {lp}")
        a.label(ok)
        flag_srd(a, SRD_X)
        a(f"s_lshl_b32 s{S_T0}, s2, 7")
        flag_store(a, SRD_X, S_T0, T + 44)
        a.label(lsk)
    def ln_row(a, r):
        lsk = a.uid("Lnoln")
        a(f"s_cbranch_vccz {lsk}")
        if r == 0: a("s_waitcnt vmcnt(%d)" % (10 if KPF == 1 else 0))
        make_srd(a, SRD_X, S_WS, WS_XN, WS_XN + XN_BYTES)
        layernorm_compute(a, T + 24 + 8 * r, T, PFV, S_ROW + r, SRD_X)
        a.label(lsk)
    def qh_setup(a):
        a(f"s_sub_u32 s{S_T2}, 15, s{S_MT}")
        a(f"v_and_b32 v{T+8}, 15, v{L}")
        a(f"v_mov_b32 v{T+9}, s{S_T2}")
        a(f"v_mov_b32 v{T+10}, s{S_MT}")
        a(f"v_and_b32 v{T+11}, 16, v{L}")
        a(f"v_cmp_eq_u32 s[{S_T0}:{S_T0+1}], 0, v{T+11}")
        a("s_nop 1")
        a(f"v_cndmask_b32 v{T+9}, v{T+10}, v{T+9}, s[{S_T0}:{S_T0+1}]")
        a(f"v_lshl_add_u32 v{T+8}, v{T+9}, 4, v{T+8}")
        a(f"v_lshlrev_b32 v{T+8}, 7, v{T+8}")
        lsk = w0_begin(a)
        flag_srd(a, SRD_X)
        flag_load(a, SRD_X, T + 8, T + 12)
        a.label(lsk)
        make_srd(a, SRD_A, S_WS, WS_XN, WS_XN + XN_BYTES)
        a(f"s_mul_i32 s{S_A0}, s{S_T2}, {128*LD_XN}")
        a(f"s_mul_i32 s{S_A1}, s{S_MT}, {128*LD_XN}")
        a(f"s_lshl_b32 s{S_T0}, s{S_NT}, 8")
        make_srd(a, SRD_W, S_WQ, f"s{S_T0}", 8 * MB)
        a(f"s_lshl_b32 s{S_T0}, s{S_SL}, 8")
        make_srd(a, SRD_W2, S_W1, f"s{S_T0}", 7 * MB)
        a(f"s_cmp_eq_u32 s{S_SL}, 99")
        a(f"s_cselect_b32 s{SRD_W2+2}, 0, s{SRD_W2+2}")
        dma_addrs(a, LD_XN, 8192, 7168)
        a(f"s_mov_b32 s{S_W0}, 0")
        a(f"s_mov_b32 s{S_W1o}, 0")
    def qh_check(a):
        lsk = w0_begin(a)
        flag_srd(a, SRD_X)
        flag_check(a, SRD_X, T + 8, T + 12, preloaded=True)
        a.label(lsk)

    a(f"s_cmp_lt_u32 s{S_NT}, 16")
    a("s_cbranch_scc0 proj_vpath")
    for swap in (False, True):
        if swap: a.label("proj_vpath")
        if not swap:
            make_srd(a, SRD_O, S_WS, WS_K, WS_K + 16 * MB)
            epi_voff_P(a, V_STO, 256)
            line_voff(a, V_STO, V_STO2, 256)
            a(f"s_lshl_b32 s{S_T0}, s{S_WN}, 7")
            a(f"s_mov_b32 s{S_S1}, 4096")
            a(f"s_mov_b32 s{S_S2}, 4096")
        else:
            make_srd(a, SRD_O, S_WS, WS_V, WS_V + 16 * MB)
            a(f"v_and_b32 v{T}, 15, v{L}")
            a(f"v_lshlrev_b32 v{T}, 7, v{T}")
            a(f"v_lshrrev_b32 v{T+1}, 4, v{L}")
            a(f"v_lshlrev_b32 v{T+1}, 4, v{T+1}")
            a(f"v_add_u32 v{V_STO}, v{T}, v{T+1}")
            line_voff(a, V_STO, V_STO2, 128)
            a(f"s_lshl_b32 s{S_T0}, s{S_WN}, 13")
            a(f"s_mov_b32 s{S_S1}, 2048")
            a(f"s_mov_b32 s{S_S2}, {16384 - 3*2048}")
        a(f"s_add_u32 s{S_STO}, s{S_STO}, s{S_T0}")
        def t0(a): tok_load(a); ln_row(a, 0)
        def t1(a): ln_row(a, 1); fprefetch(a, S_WQ, 8 * MB, 8, [0, 1, 2, 3])
        def t3(a): ln_signal(a); fprefetch(a, S_WQ, 8 * MB, 8, [4, 5, 6, 7])
        kstep(a, 0, swap, tail=t0, czero=True)
        kstep(a, 1, swap, tail=t1)
        if PD: stamp(a, 2)
        kstep(a, 0, swap, tail=lambda a: fprefetch(a, S_W1, 7 * MB, 8, [0, 1, 2, 3]))
        kstep(a, 1, swap, fvm=8, tail=t3)
        kstep(a, 0, swap, w0x=1, tail=lambda a: fprefetch(a, S_W1, 7 * MB, 8, [4, 5, 6, 7]))
        kstep(a, 1, swap)
        if PD: stamp(a, 3)
        kstep(a, 0, swap, start=qh_setup, before_bar=qh_check)
        kstep(a, 1, swap)
        a("s_nop 7")
        lw = a.uid("Lpw")
        a(f"s_cbranch_vccz {lw}")
        a("s_waitcnt vmcnt(0)")
        a.label(lw)
        for j in range(16):
            pack_quad(a, j, swap)
            if j & 1:
                a("s_nop 0")
                line_xchg(a, quad_tmp(j - 1), quad_tmp(j), V_ACC + 8 * (j - 1) if not swap else acc(2 * (2 * (j >> 3)), (j >> 1) & 3))
            if j == 1: store_pair(a, 0)
            if j == 3: store_pair(a, 1)
        if not swap: a("s_branch proj_qh")
    a.label("proj_qh")
    if PD: stamp(a, 4)
    a(f"s_lshl_b32 s{S_T0}, s{S_HALF}, 8")
    a(f"s_add_u32 s{S_T0}, s{S_T0}, s{S_SL}")
    a(f"s_cmp_eq_u32 s{S_T0}, {256 + 99}")
    a("s_cbranch_scc1 proj_noh")
    if BURST:
        lb = a.uid("Lnb")
        a(f"s_cbranch_vccnz {lb}")
        for t in range(2, 8): store_pair(a, t)
        a.label(lb)
        def fst(a, t):
            l = a.uid("Lfs")
            a(f"s_cbranch_vccz {l}")
            store_pair(a, (t >> 1) + 2, t & 1)
            a.label(l)
        for t in range(12):
            kstep(a, t & 1, False, vm=(16 if t == 0 else 0), tail=(lambda a, t=t: fst(a, t)), czero=(t == 0))
    else:
        for t in range(12):
            kstep(a, t & 1, False, vm=(4 if t == 0 else 1), tail=(lambda a, t=t: store_pair(a, (t >> 1) + 2, t & 1)), czero=(t == 0))
    def kv_flag(a):
        lsk = w0_begin(a)
        flag_srd(a, SRD_X)
        a(f"s_lshl_b32 s{S_T0}, s{S_NT}, 3")
        a(f"s_add_u32 s{S_T0}, s{S_T0}, s{S_MT}")
        a(f"s_lshl_b32 s{S_T0}, s{S_T0}, 7")
        a(f"s_add_u32 s{S_T0}, s{S_T0}, {F_KV}")
        flag_store(a, SRD_X, S_T0, T)
        a.label(lsk)
    kstep(a, 0, False, fvm=0, tail=kv_flag)
    kstep(a, 1, False, w0x=1)
    def bias_load(a):
        lsk = a.uid("Lnb")
        a(f"s_cbranch_vccz {lsk}")
        make_srd(a, SRD_X, S_B2, 0, 2048)
        a(f"v_lshlrev_b32 v{T+41}, 4, v{L}")
        a(f"s_lshl_b32 s{S_T0}, s{S_WN}, 10")
        a(f"buffer_load_dwordx4 {vr(T+44,4)}, v{T+41}, s[{SRD_X}:{SRD_X+3}], s{S_T0} offen")
        make_srd(a, SRD_X, S_B1, 0, 7168)
        a(f"v_lshrrev_b32 v{T+40}, 4, v{L}")
        a(f"v_lshlrev_b32 v{T+40}, 3, v{T+40}")
        a(f"s_lshl_b32 s{S_T0}, s{S_SL}, 8")
        a(f"s_lshl_b32 s{S_T1}, s{S_WN}, 7")
        a(f"s_add_u32 s{S_T1}, s{S_T1}, s{S_T0}")
        for nb in range(4):
            a(f"buffer_load_dwordx2 {vr(T+32+2*nb,2)}, v{T+40}, s[{SRD_X}:{SRD_X+3}], s{S_T1} offen offset:{32*nb}")
        a.label(lsk)
    kstep(a, 0, False, dma_on=False, start=bias_load)
    def kv_poll(a):
        a(f"v_and_b32 v{T+44}, 7, v{L}")
        a(f"v_and_b32 v{T+45}, 8, v{L}")
        a(f"v_lshlrev_b32 v{T+45}, 4, v{T+45}")
        a(f"v_add_u32 v{T+44}, v{T+44}, v{T+45}")
        a(f"s_lshr_b32 s{S_T0}, s{S_NT}, 1")
        a(f"s_lshl_b32 s{S_T0}, s{S_T0}, 3")
        a(f"v_add_u32 v{T+44}, s{S_T0}, v{T+44}")
        a(f"v_lshlrev_b32 v{T+44}, 7, v{T+44}")
        a(f"v_add_u32 v{T+44}, {F_KV}, v{T+44}")
        lsk = w0_begin(a)
        flag_srd(a, SRD_X)
        flag_load(a, SRD_X, T + 44, T + 46)
        a.label(lsk)
    kstep(a, 1, False, dma_on=False, last=True, start=kv_poll)
    lsk = w0_begin(a)
    a("s_waitcnt vmcnt(0)")
    flag_srd(a, SRD_X)
    flag_check(a, SRD_X, T + 44, T + 46, preloaded=True)
    a.label(lsk)
    a("s_branch proj_loop_done")
    a.label("proj_noh")
    a("s_waitcnt lgkmcnt(0)")
    for t in range(2, 8): store_pair(a, t)
    a("s_waitcnt vmcnt(0)")
    for _ in range(15): a("s_barrier")
    a.label("proj_loop_done")
    a("s_barrier")
    stamp(a, 5 if PD else 1)
    a(f"s_mov_b32 s{S_PM}, s{S_WM}")
    a(f"s_mov_b32 s{S_PN}, s{S_WN}")
    a(f"s_mov_b32 s{AT.SA_KH}, s{S_HALF}")
    a(f"s_and_b32 s{AT.SA_QW}, s{S_W}, 3")
    AT.attn_ids(a)
    AT.attn_early(a, vdma=False)
    if EPF:
        a(f"v_lshlrev_b32 v{AT.AV_T}, 4, v{L}")
        a(f"s_lshl_b32 s{S_T0}, s2, 3")
        a(f"s_add_u32 s{S_T0}, s{S_T0}, s{S_W}")
        a(f"s_lshl_b32 s{S_T0}, s{S_T0}, 12")
        a(f"s_lshl_b32 s{S_T1}, s{S_W}, 10")
        for base, tot in ((S_WO, 8 * MB), (S_W2, 7 * MB)):
            make_srd(a, SRD_X, base, 0, tot)
            for j in range(4):
                a(f"s_sub_u32 m0, s{S_T1}, {(j*1024 - 2*AT.GRP) & 0xffffffff}")
                a("s_nop 0")
                a(f"buffer_load_dwordx4 v{AT.AV_T}, s[{SRD_X}:{SRD_X+3}], s{S_T0} offen offset:{j*1024} lds")
    a("s_cbranch_vccnz proj_hepi")
    cs = f32(128 ** -0.5 * math.log2(math.e))
    a(f"s_mov_b32 s{S_T4}, {cs}")
    a(f"s_mov_b32 s{S_T5}, {cs}")
    a(f"v_and_b32 v{T}, 15, v{L}")
    a(f"v_lshlrev_b32 v{T}, 4, v{T}")
    a(f"v_lshrrev_b32 v{T+1}, 4, v{L}")
    a(f"v_and_b32 v{T+2}, 1, v{T+1}")
    a(f"v_lshlrev_b32 v{T+2}, 10, v{T+2}")
    a(f"v_lshrrev_b32 v{T+1}, 1, v{T+1}")
    a(f"v_lshlrev_b32 v{T+1}, 9, v{T+1}")
    a(f"v_add3_u32 v{T+8}, v{T}, v{T+1}, v{T+2}")
    a(f"s_mul_i32 s{S_T0}, s{S_PM}, {AT.GRP}")
    a(f"s_lshl_b32 s{S_T1}, s{S_PN}, 12")
    a(f"s_add_u32 s{S_T0}, s{S_T0}, s{S_T1}")
    a(f"s_add_u32 s{S_T0}, s{S_T0}, {2*AT.SLOT}")
    a(f"v_add_u32 v{T+8}, s{S_T0}, v{T+8}")
    k = 0
    for mb in range(8):
        for p in range(2):
            t = T + 16 + 4 * (k % 8); k += 1
            b0, b1 = acc(mb, 2 * p), acc(mb, 2 * p + 1)
            for b in (b0, b1):
                for r in (0, 2):
                    a(f"v_pk_mul_f32 {vr(b+r,2)}, {vr(b+r,2)}, s[{S_T4}:{S_T4+1}]")
            a(f"v_cvt_pk_bf16_f32 v{t}, v{b0}, v{b0+1}")
            a(f"v_cvt_pk_bf16_f32 v{t+1}, v{b0+2}, v{b0+3}")
            a(f"v_cvt_pk_bf16_f32 v{t+2}, v{b1}, v{b1+1}")
            a(f"v_cvt_pk_bf16_f32 v{t+3}, v{b1+2}, v{b1+3}")
            a("s_nop 1")
            a(f"v_permlane16_swap_b32 v{t}, v{t+2}")
            a(f"v_permlane16_swap_b32 v{t+1}, v{t+3}")
            a("s_nop 0")
            a(f"ds_write_b128 v{T+8}, {vr(t,4)} offset:{(mb>>1)*8192 + (mb&1)*256 + p*2048}")
    a.label("proj_w0")
    a("s_waitcnt vmcnt(%d) lgkmcnt(0)" % (8 if EPF else 0))
    a("s_branch proj_done")
    a.label("proj_hepi")
    a(f"s_cmp_eq_u32 s{S_SL}, 99")
    a("s_cbranch_scc1 proj_w0")
    make_srd(a, SRD_O, S_WS, WS_ACT2, WS_ACT2 + 2048 * LD_ACT2)
    epi_voff_P(a, V_WF, LD_ACT2)
    line_voff(a, V_WF, V_WF + 1, LD_ACT2)
    a("s_waitcnt vmcnt(0)")
    for nb in range(4):
        for j in range(2):
            a(f"v_lshlrev_b32 v{V_BIAS+4*nb+2*j}, 16, v{T+32+2*nb+j}")
            a(f"v_and_b32 v{V_BIAS+4*nb+2*j+1}, 0xffff0000, v{T+32+2*nb+j}")
    c0 = -2.0 * math.sqrt(2.0 / math.pi) * math.log2(math.e)
    c1 = c0 * 0.044715
    a(f"s_mov_b32 s{S_T4}, {f32(c1)}")
    a(f"s_mov_b32 s{S_T5}, {f32(c1)}")
    a(f"v_mov_b32 v{V_AF+8}, {f32(c0)}")
    a(f"v_mov_b32 v{V_AF+9}, {f32(c0)}")
    a(f"v_mov_b32 v{V_AF+10}, 1.0")
    a(f"v_mov_b32 v{V_AF+11}, 1.0")
    a(f"s_cmp_eq_u32 s{S_PM}, 0")
    a(f"s_cselect_b32 s{S_T0}, s{AT.SA_QA}, s{AT.SA_QB}")
    a(f"s_mul_i32 s{S_T7}, s{S_T0}, {128*LD_ACT2}")
    a(f"s_lshl_b32 s{S_T0}, s{S_SL}, 8")
    a(f"s_add_u32 s{S_T7}, s{S_T7}, s{S_T0}")
    a(f"s_lshl_b32 s{S_T0}, s{S_PN}, 7")
    a(f"s_add_u32 s{S_T7}, s{S_T7}, s{S_T0}")
    a(f"s_add_u32 s{S_T7}, s{S_T7}, 8192")
    k = 0
    for mb in range(8):
        ts = []
        for p in range(2):
            t = T + 16 + 4 * (k % 8); k += 1; ts.append(t)
            b0, b1 = acc(mb, 2 * p), acc(mb, 2 * p + 1)
            gelu_pk(a, mb, 2 * p); gelu_pk(a, mb, 2 * p + 1)
            a(f"v_cvt_pk_bf16_f32 v{t}, v{b0}, v{b0+1}")
            a(f"v_cvt_pk_bf16_f32 v{t+1}, v{b0+2}, v{b0+3}")
            a(f"v_cvt_pk_bf16_f32 v{t+2}, v{b1}, v{b1+1}")
            a(f"v_cvt_pk_bf16_f32 v{t+3}, v{b1+2}, v{b1+3}")
            a("s_nop 1")
            a(f"v_permlane16_swap_b32 v{t}, v{t+2}")
            a(f"v_permlane16_swap_b32 v{t+1}, v{t+3}")
        a("s_nop 0")
        line_xchg(a, ts[0], ts[1], acc(mb, 0))
        for p in range(2):
            a(f"buffer_store_dwordx4 {vr(ts[p],4)}, v{V_WF+p}, s[{SRD_O}:{SRD_O+3}], s{S_T7} offen sc0 sc1")
        if mb < 7: a(f"s_add_u32 s{S_T7}, s{S_T7}, {16*LD_ACT2}")
    a.label("proj_done")
    a("s_setprio 0")
    return KNAME

S_CNT_ = 15
S_PM, S_PN = 84, 85
```

```python
import sys
sys.path.insert(0, "dev")
from asmlib import *
from gen_common import *
import gen_gemm, gen_proj3, gen_attn6 as AT, gen_out4

def main(path=None):
    a = Asm()
    hdr = open(f"cdna_kernels/{NAME}.s.ref").read().split("\n")
    head = [l for l in hdr if l.startswith(";") and "@launch" not in l]
    out = list(head)
    out.append("; @launch grid=(256,1,1) block=(512,1,1) lds=163840")
    out.append('.amdgcn_target "amdgcn-amd-amdhsa--gfx950"')
    gen_gemm.EPI_FLAGS[0] = "sc0 sc1"
    name = gen_proj3.gen_proj(a)
    gen_gemm.EPI_FLAGS[0] = ""
    def hflag(a):
        lsk = w0_begin(a)
        a(f"s_cmp_eq_u32 s{gen_proj3.S_SL}, 99")
        a(f"s_cbranch_scc1 {lsk}")
        flag_srd(a, AT.SRD_Q)
        a(f"s_lshl_b32 s{S_T0}, s{gen_proj3.S_SL}, 3")
        a(f"s_add_u32 s{S_T0}, s{S_T0}, s{AT.SA_QB}")
        a(f"s_lshl_b32 s{S_T0}, s{S_T0}, 7")
        a(f"s_add_u32 s{S_T0}, s{S_T0}, {F_QH}")
        flag_store(a, AT.SRD_Q, S_T0, AT.AV_X)
        a.label(lsk)
    AT.attn_late(a, hflag)
    stamp(a, 3)
    a(f"s_mov_b32 s4, s{AT.SA_H}")
    a(f"s_mov_b32 s5, s{AT.SA_QA}")
    a(f"s_mov_b32 s6, s{AT.SA_QB}")
    def pre(a):
        a("s_waitcnt vmcnt(0)")
        a("s_barrier")
        lsk = w0_begin(a)
        flag_srd(a, SRD_X)
        for q in (5, 6):
            a(f"s_lshl_b32 s{S_T0}, s{q}, 5")
            a(f"s_add_u32 s{S_T0}, s{S_T0}, s4")
            a(f"s_lshl_b32 s{S_T0}, s{S_T0}, 7")
            a(f"s_add_u32 s{S_T0}, s{S_T0}, {F_CTX}")
            flag_store(a, SRD_X, S_T0, gen_gemm.V_TMP + 40)
        a.label(lsk)
    gen_out4.out_phase(a, pre)
    stamp_flush(a, 0, 5)
    a.label("fused_end")
    a("s_endpgm")
    a.label("text_end")
    out.append(a.text())
    out.append('.section .rodata,"a"')
    out.append(kernel_desc(name, 256, 102))
    open(path or f"cdna_kernels/{NAME}.s", "w").write("\n".join(out))

if __name__ == "__main__":
    main(sys.argv[1] if len(sys.argv) > 1 else None)
```

```python
import sys, math
sys.path.insert(0, "dev")
from asmlib import *

NAME = "parallel_sum__compressed_kv_cla__dense_activation_gelu__prompt"
MB = 1 << 20
WS_XN, WS_Q, WS_K, WS_V, WS_ACT2, WS_PART = 0, 4 * MB, 20 * MB, 36 * MB, 52 * MB, 84 * MB
WS_SIZE = 256 * MB
import os
LD_ACT2 = 7680 * 2 + int(os.environ.get('PAD_ACT2', '128'))
LD_XN = 2048 + int(os.environ.get('PAD_XN', '128'))
WS_XN = 210 * MB
XN_BYTES = 2048 * LD_XN

S_X, S_CKV, S_WQ, S_WUK, S_WUV, S_WO, S_BX, S_W1 = 16, 18, 20, 22, 24, 26, 28, 30
S_B1, S_W2, S_B2, S_OUT, S_DBG, S_WS = 32, 34, 36, 38, 40, 42
SRD_A, SRD_W, SRD_O, SRD_X = 44, 48, 52, 56
S_W, S_WM, S_WN, S_LDSW = 60, 61, 62, 63
S_OFFA, S_OFFW, S_WSTEP, S_CNT = 64, 65, 66, 67
S_T0, S_T1, S_T2, S_T3 = 68, 69, 70, 71
S_MT, S_NT, S_LDW = 72, 73, 74
S_T4, S_T5, S_T6, S_T7 = 76, 77, 78, 79

def load_args(a):
    a("s_load_dwordx16 s[16:31], s[0:1], 0")
    a("s_load_dwordx8 s[32:39], s[0:1], 64")
    a("s_load_dwordx4 s[40:43], s[0:1], 96")

def make_srd(a, srd, base, off_sreg_or_imm, total):
    if isinstance(off_sreg_or_imm, int):
        off = off_sreg_or_imm
        a(f"s_add_u32 s{srd}, s{base}, {off}")
        a(f"s_addc_u32 s{srd+1}, s{base+1}, 0")
        a(f"s_mov_b32 s{srd+2}, {total - off}")
    else:
        off = off_sreg_or_imm
        a(f"s_add_u32 s{srd}, s{base}, {off}")
        a(f"s_addc_u32 s{srd+1}, s{base+1}, 0")
        a(f"s_sub_u32 s{srd+2}, {total}, {off}")
    a(f"s_and_b32 s{srd+1}, s{srd+1}, 0xffff")
    a(f"s_mov_b32 s{srd+3}, 0x00020000")

def kstart(a, name):
    a.raw(".text")
    a.raw(f".globl {name}")
    a.raw(".p2align 8")
    a.raw(f".type {name},@function")
    a.label(name)


import os
STAMP = os.environ.get("STAMP", "0") == "1"
WS_STAMP = 240 * MB
S_TOK = 12
S_ST = 88
FROZEN = [False]
RSTAMP = os.environ.get("RSTAMP", "0") == "1"
def stamp(a, idx):
    if RSTAMP:
        a("s_memrealtime s[86:87]")
        a("s_waitcnt lgkmcnt(0)")
        a(f"s_mov_b32 s{S_ST+idx}, s86")
        return
    if not STAMP: return
    if FROZEN[0]: return
    if os.environ.get('PD', '') == '1' and idx == 5: FROZEN[0] = True
    if idx == 0:
        a("s_memrealtime s[86:87]")
        a("s_waitcnt lgkmcnt(0)")
        a("s_mov_b32 s95, s86")
        a("s_mov_b32 s94, s86")
    a("s_memtime s[86:87]")
    a("s_waitcnt lgkmcnt(0)")
    a(f"s_mov_b32 s{S_ST+idx}, s86")
def stamp_flush(a, kidx, n):
    if RSTAMP:
        a("s_waitcnt vmcnt(0)")
        stamp(a, n)
        l = a.uid("Lrs")
        a(f"s_cmp_lg_u32 s{S_W}, 0")
        a(f"s_cbranch_scc1 {l}")
        a("s_cmp_eq_u32 s2, 0")
        a("s_cselect_b32 s84, 8, 36")
        a("s_cselect_b32 s85, 0, 5")
        a("s_cmp_lg_u32 s2, s85")
        a(f"s_cbranch_scc1 {l}")
        make_srd(a, 80, S_DBG, 0, 256)
        a("v_mov_b32 v0, 0")
        a("s_mov_b64 exec, 1")
        for i in range(n + 1):
            a(f"s_sub_u32 s86, s{S_ST+i}, s{S_TOK}")
            a("v_mov_b32 v2, s86")
            a(f"buffer_store_dword v2, v0, s[80:83], s84 offen offset:{4*i}")
        a("s_mov_b64 exec, -1")
        a.label(l)
        return
    if not STAMP: return
    a("s_waitcnt vmcnt(0)")
    stamp(a, n)
    a("s_memrealtime s[86:87]")
    a("s_waitcnt lgkmcnt(0)")
    a("s_sub_u32 s95, s86, s95")
    n = 7
    make_srd(a, 80, S_WS, WS_STAMP + kidx * 65536, WS_STAMP + (kidx + 1) * 65536)
    a("s_lshl_b32 s84, s2, 3")
    a(f"s_add_u32 s84, s84, s{S_W}")
    a("s_lshl_b32 s84, s84, 5")
    a("v_mov_b32 v0, 0")
    for i in range(n + 1):
        a(f"v_mov_b32 v2, s{S_ST+i}")
        a(f"buffer_store_dword v2, v0, s[80:83], s84 offen offset:{4*i}")

WS_FLAG = 200 * MB
F_LN, F_KV, F_QH, F_CTX, F_PART = 0, 32768, 65536, 98304, 163840
FLAG_BYTES = 262144
S_SPIN = 14
def flag_srd(a, srd):
    make_srd(a, srd, S_WS, WS_FLAG, WS_FLAG + FLAG_BYTES)
def flag_store(a, srd, soff, vt):
    a(f"v_mov_b32 v{vt}, s{S_TOK}")
    a(f"v_mov_b32 v{vt+1}, s{S_TOK+1}")
    a(f"v_mov_b32 v{vt+2}, 0")
    a("s_mov_b64 exec, 1")
    a(f"buffer_store_dwordx2 {vr(vt,2)}, v{vt+2}, s[{srd}:{srd+3}], s{soff} offen sc0 sc1")
    a("s_mov_b64 exec, -1")
def flag_load(a, srd, voff, vp):
    a(f"buffer_load_dwordx2 {vr(vp,2)}, v{voff}, s[{srd}:{srd+3}], 0 offen sc0 sc1")
def flag_check(a, srd, voff, vp, preloaded=False):
    lp, ok, ld = a.uid("Lpoll"), a.uid("Lok"), a.uid("Lld")
    a(f"s_mov_b32 s{S_SPIN}, 0x400000")
    if preloaded:
        a(f"s_branch {lp}")
    a.label(ld)
    flag_load(a, srd, voff, vp)
    a("s_waitcnt vmcnt(0)")
    a.label(lp)
    a(f"v_cmp_ne_u32 vcc, s{S_TOK}, v{vp}")
    a(f"v_cmp_ne_u32 s[{S_T0}:{S_T0+1}], s{S_TOK+1}, v{vp+1}")
    a("s_nop 3")
    a(f"s_or_b64 vcc, vcc, s[{S_T0}:{S_T0+1}]")
    a(f"s_cbranch_scc0 {ok}")
    a("s_sleep 1")
    a(f"s_sub_u32 s{S_SPIN}, s{S_SPIN}, 1")
    a(f"s_cmp_lg_u32 s{S_SPIN}, 0")
    a(f"s_cbranch_scc1 {ld}")
    a("s_mov_b64 vcc, 0")
    a.label(ok)
def w0_begin(a):
    l = a.uid("Lnw0")
    a(f"s_cmp_lg_u32 s{S_W}, 0")
    a(f"s_cbranch_scc1 {l}")
    return l
```
